```python
import torch

def _softmax(x, axis=-1):
    return torch.softmax(x, dim=axis)
def _gelu(x):
    return torch.nn.functional.gelu(x, approximate="tanh")
def _silu(x):
    return torch.nn.functional.silu(x)
def _sigmoid(x):
    return torch.sigmoid(x)
def _layernorm(x, axis=-1, eps=1e-5):
    m = x.mean(dim=axis, keepdim=True)
    v = x.var(dim=axis, keepdim=True, unbiased=False)
    return (x - m) / torch.sqrt(v + eps)
def _scatter_add(tgt, idx, src, axis=0):
    return tgt.clone().index_add_(axis, idx, src)
def _segment_sum(src, seg, n):
    out = torch.zeros((n,) + src.shape[1:], dtype=src.dtype)
    return out.index_add_(0, seg, src)
def _pad(x, pw):
    flat = tuple(v for pair in reversed(pw) for v in pair)
    return torch.nn.functional.pad(x, flat)

kernel_name = 'recurrent_scan__mha_block_cached__geglu_ffn__decode'

def setup_inputs():

    _w = (lambda a: (lambda t: t.to(torch.bfloat16) if t.is_floating_point() else t)(torch.as_tensor(a)))
    def _A_setup():
        B, Sq, D = 2, 1, 512
        H, Sk, Dh = 32, 8192, 128
        return {
            "x": _w((lambda *s: torch.randn(*s, dtype=torch.bfloat16) * 0.05)(B, Sq, D)),
            "k_cache": _w((lambda *s: torch.randn(*s, dtype=torch.bfloat16) * 1.6)(B, H, Sk, Dh)),
            "v_cache": _w((lambda *s: torch.randn(*s, dtype=torch.bfloat16) * 0.2)(B, H, Sk, Dh)),
            "wq": _w((lambda *s: torch.randn(*s, dtype=torch.bfloat16) * 1.6)(D, H * Dh) * (D ** -0.5)),
            "wo": _w((lambda *s: torch.randn(*s, dtype=torch.bfloat16) * 0.2)(H * Dh, D) * ((H * Dh) ** -0.5)),
        }
    _A_in = _A_setup()

    def _B_setup():
        B, S, D, F = 2, 1, 512, 1376
        return {
            "x": _w((lambda *s: torch.randn(*s, dtype=torch.bfloat16) * 0.05)(B, S, D)),
            "w_gate": _w((lambda *s: torch.randn(*s, dtype=torch.bfloat16) * 0.1)(D, F)),
            "w_up": _w((lambda *s: torch.randn(*s, dtype=torch.bfloat16) * 0.1)(D, F)),
            "w_down": _w((lambda *s: torch.randn(*s, dtype=torch.bfloat16) * 0.1)(F, D)),
        }
    _B_in = _B_setup()

    return {
        "A_x": _A_in["x"],
        "A_k_cache": _A_in["k_cache"],
        "A_v_cache": _A_in["v_cache"],
        "A_wq": _A_in["wq"],
        "A_wo": _A_in["wo"],
        "B_x": _B_in["x"],
        "B_w_gate": _B_in["w_gate"],
        "B_w_up": _B_in["w_up"],
        "B_w_down": _B_in["w_down"],
    }

def reference(A_x, A_k_cache, A_v_cache, A_wq, A_wo, B_x, B_w_gate, B_w_up, B_w_down):
    def _A_ref(x, k_cache, v_cache, wq, wo):
        B, Sq, D = x.shape
        H, Dh = 32, 128
        q = (lambda x, *d: x.permute(*d))((x @ wq).reshape(B, Sq, H, Dh), 0, 2, 1, 3)
        scores = torch.einsum("bhqd,bhkd->bhqk", q, k_cache) * (Dh ** -0.5)
        p = _softmax(scores, axis=-1)
        o = torch.einsum("bhqk,bhkd->bhqd", p, v_cache)
        return (lambda x, *d: x.permute(*d))(o, 0, 2, 1, 3).reshape(B, Sq, H * Dh) @ wo

    def _B_ref(x, w_gate, w_up, w_down):
        return (_gelu(x @ w_gate) * (x @ w_up)) @ w_down

    x = A_x
    xn = _layernorm(x, axis=-1)
    s = _A_ref(xn, A_k_cache, A_v_cache, A_wq, A_wo)
    g = _silu(_B_ref(xn, B_w_gate, B_w_up, B_w_down))
    return x + s * g
```

```python
import re

TRANS = ("v_exp_f32", "v_log_f32", "v_rcp_f32", "v_rsq_f32", "v_sqrt_f32", "v_sin_f32", "v_cos_f32", "v_rcp_iflag_f32")

def parse_regs(tok):
    tok = tok.strip()
    tok = tok.lstrip('-')
    m = re.fullmatch(r"abs\((.*)\)", tok) or re.fullmatch(r"\|(.*)\|", tok)
    if m:
        tok = m.group(1)
    m = re.fullmatch(r"([vsa])\[(\d+):(\d+)\]", tok)
    if m:
        return [(m.group(1), i) for i in range(int(m.group(2)), int(m.group(3)) + 1)]
    m = re.fullmatch(r"([vsa])(\d+)", tok)
    if m:
        return [(m.group(1), int(m.group(2)))]
    if tok in ("vcc", "vcc_lo", "vcc_hi"):
        return [("vcc", 0)]
    if tok in ("exec", "exec_lo", "exec_hi"):
        return [("exec", 0)]
    if tok == "m0":
        return [("m0", 0)]
    return []


class Asm:
    def __init__(self):
        self.lines = []
        self.pos = 0
        self.lastw = {}
        self.mfma_c_read = {}
        self.store_data = {}
        self.vm = []
        self.nops = 0
        self.ninst = 0

    def raw(self, s):
        self.lines.append(s)

    def comment(self, s):
        self.lines.append("    ; " + s)

    def label(self, name, pad=True):
        if pad:
            self.nop(8)
        self.lines.append(name + ":")

    def nop(self, n):
        while n > 0:
            k = min(n, 16)
            self.lines.append("    s_nop %d" % (k - 1))
            self.pos += k
            self.nops += 1
            n -= k

    def __call__(self, text, tag=None):
        text = text.strip()
        op, _, rest = text.partition(" ")
        ops = []
        depth = 0
        cur = ""
        for ch in rest:
            if ch in "[(":
                depth += 1
            if ch in "])":
                depth -= 1
            if ch == "," and depth == 0:
                ops.append(cur)
                cur = ""
            else:
                cur += ch
        ops.append(cur)
        mods = ""
        if ops:
            last = ops[-1].strip()
            parts = last.split(None, 1)
            if parts:
                ops[-1] = parts[0]
                mods = parts[1] if len(parts) > 1 else ""
        ops = [o.strip() for o in ops if o.strip() != ""]
        is_valu = op.startswith("v_") and not op.startswith("v_mfma")
        is_mfma = op.startswith("v_mfma")
        is_vmem = op.startswith("buffer_") or op.startswith("global_")
        is_ds = op.startswith("ds_")
        is_salu = op.startswith("s_")
        is_dpp = op.endswith("_dpp") or "row_" in mods or "quad_perm" in mods
        is_perml = op.startswith("v_permlane")
        is_dot = op.startswith("v_dot")
        is_trans = any(op.startswith(t) for t in TRANS)
        writes, reads = [], []
        if is_valu:
            if op.startswith("v_cmp"):
                writes = parse_regs(ops[0])
                for o in ops[1:]:
                    reads += parse_regs(o)
            elif is_perml:
                writes = parse_regs(ops[0]) + parse_regs(ops[1])
                reads = list(writes)
            else:
                writes = parse_regs(ops[0])
                k = 1
                if "_co_" in op:
                    writes += parse_regs(ops[1])
                    k = 2
                for o in ops[k:]:
                    reads += parse_regs(o)
                if op.startswith("v_fmac") or op.startswith("v_dot2c") or is_dpp or op.startswith("v_writelane"):
                    reads += parse_regs(ops[0])
                if op.startswith("v_cndmask") and len(ops) == 3:
                    reads.append(("vcc", 0))
        elif is_mfma:
            writes = parse_regs(ops[0])
            reads = parse_regs(ops[1]) + parse_regs(ops[2]) + parse_regs(ops[3])
        elif is_vmem:
            if "load" in op:
                writes = parse_regs(ops[0])
                for o in ops[1:]:
                    reads += parse_regs(o)
            else:
                for o in ops:
                    reads += parse_regs(o)
                if "atomic" in op and "sc0" in mods:
                    writes = parse_regs(ops[0])
        elif is_ds:
            if "read" in op or "permute" in op or "swizzle" in op:
                writes = parse_regs(ops[0])
                for o in ops[1:]:
                    reads += parse_regs(o)
            else:
                for o in ops:
                    reads += parse_regs(o)
        elif is_salu:
            if op.startswith("s_cmp") or op.startswith("s_cbranch") or op in ("s_waitcnt", "s_barrier", "s_branch", "s_endpgm", "s_sleep", "s_setprio", "s_nop"):
                for o in ops:
                    reads += parse_regs(o)
            else:
                writes = parse_regs(ops[0]) if ops else []
                for o in ops[1:]:
                    reads += parse_regs(o)
        need = 0
        def req(p, ws):
            nonlocal need
            need = max(need, p + 1 + ws)
        for r in reads:
            lw = self.lastw.get(r)
            if lw is None:
                continue
            p, kind, wop, drange = lw
            if kind in ("valu", "trans", "dot"):
                if r[0] == "v":
                    if is_dpp or is_perml:
                        req(p, 2)
                    if is_mfma:
                        req(p, 2)
                    if op.startswith("v_readlane") or op.startswith("v_readfirstlane"):
                        req(p, 1)
                    if kind == "trans" and (is_valu or is_mfma) :
                        req(p, 1)
                    if kind == "dot":
                        same_c = (op == wop) and is_dot and (r in (parse_regs(ops[3]) if len(ops) > 3 else parse_regs(ops[0]))) and r not in parse_regs(ops[1]) + parse_regs(ops[2])
                        if not same_c:
                            req(p, 3)
                else:
                    if is_valu:
                        req(p, 4 if op.startswith("v_readlane") or op.startswith("v_writelane") else 2)
                    if is_vmem:
                        req(p, 5)
                    if is_salu:
                        req(p, 1)
            elif kind == "mfma":
                if is_mfma:
                    creg = parse_regs(ops[3])
                    if r in creg and creg == drange and r not in parse_regs(ops[1]) + parse_regs(ops[2]):
                        pass
                    elif r in creg and r not in parse_regs(ops[1]) + parse_regs(ops[2]):
                        req(p, 6)
                    else:
                        req(p, 8)
                else:
                    req(p, 8)
        for r in writes:
            lw = self.lastw.get(r)
            if lw is not None:
                p, kind, wop, drange = lw
                if kind == "mfma" and not is_mfma:
                    req(p, 8)
                if kind == "dot" and not (is_dot and op == wop):
                    req(p, 3)
            if is_valu:
                if r in self.mfma_c_read:
                    req(self.mfma_c_read[r], 3)
                if r in self.store_data:
                    req(self.store_data[r], 2)
            elif r in self.store_data:
                req(self.store_data[r], 1)
        if need > self.pos:
            self.nop(need - self.pos)
        self.lines.append("    " + text)
        self.ninst += 1
        kind = None
        if is_mfma:
            kind = "mfma"
        elif is_valu:
            kind = "dot" if is_dot else ("trans" if is_trans else "valu")
        elif is_salu:
            kind = "salu"
        else:
            kind = "mem"
        for r in writes:
            self.lastw[r] = (self.pos, kind, op, writes)
        if is_mfma:
            for r in parse_regs(ops[3]):
                self.mfma_c_read[r] = self.pos
        if is_vmem and ("store" in op) and ("x4" in op or "x3" in op):
            for r in parse_regs(ops[0] if op.startswith("buffer") else ops[1]):
                self.store_data[r] = self.pos
        if is_vmem:
            self.vm.append(tag if tag is not None else object())
        if op == "s_nop":
            self.pos += int(ops[0]) + 1
        else:
            self.pos += 1

    def wait_vm(self, tag):
        if tag not in self.vm:
            return
        i = self.vm.index(tag)
        n = len(self.vm) - 1 - i
        assert n <= 63, n
        self("s_waitcnt vmcnt(%d)" % n)
        self.vm = self.vm[i + 1:]

    def wait_vm_all(self):
        self("s_waitcnt vmcnt(0)")
        self.vm = []

    def wait_lgkm(self, n=0):
        self("s_waitcnt lgkmcnt(%d)" % n)

    def text(self):
        return "\n".join(self.lines) + "\n"
```

```python
import sys, struct
from asmlib import Asm

NAME = "recurrent_scan__mha_block_cached__geglu_ffn__decode"
HEADER = open("cdna_kernels/%s.s.ref" % NAME).read().split("; Override launch")[0]

def f2u(x):
    return struct.unpack("<I", struct.pack("<f", x))[0]

LOG2E = 1.4426950408889634
OOB = 0x80000000

WS_Y = 0
WS_ST = 0x80000
WS_FF = 0x100000
WS_SIZE = 0x200000
LDSQ, LDSF, LDSML, LDSO, LDSY, LDSR = 0, 4096, 4608, 5120, 9216, 13312
LDS_BYTES = 16384


def gen(R=32, pattern="gwg4", pol="nt", wpol="", wo_at=32):
    a = Asm()
    sX, sK, sV, sWQ, sWO, sGU, sWD, sOUT, sDBG, sWS = [f"s[{i}:{i+3}]" for i in range(4, 44, 4)]
    sXCD, sJ, sH, sB, sSP, sBH, sW = "s48", "s49", "s50", "s51", "s52", "s53", "s54"
    sKoff, sVoff, sWQoff, sWOoff, sWDoff, sSlice = "s55", "s56", "s57", "s58", "s59", "s60"
    sT0, sT1, sT2, sT3 = "s61", "s62", "s63", "s68"
    sOdd, sTwo, sBmask = "s[64:65]", "s[66:67]", "s[70:71]"
    sLOG2E, sSCALE, sHI, sCons, sP, sCnt = "s72", "s73", "s74", "s75", "s76", "s77"
    sFFv = "s78"
    vTid, vLane, vOffK, vOffWq, vOffWo, vG, vC = "v0", "v1", "v2", "v3", "v4", "v5", "v6"
    vD0 = "v7"
    vSel = ["v8", "v9", "v10", "v11"]
    vQ = ["v12", "v13", "v14", "v15"]
    vS = ["v16", "v17", "v18", "v19"]
    ACC = 20
    vA = [24, 28]
    vBc = ["v32", "v33"]
    vYoff, vSToff, vFFoff = "v34", "v35", "v36"
    vCQ = "v37"
    vM, vL = "v38", "v39"
    P0 = 40
    T = 56
    RING = 256 - 4 * R
    def v(i): return f"v{i}"
    def vr(i, n=4): return f"v[{i}:{i+n-1}]"

    a.raw(HEADER.rstrip("\n"))
    a.raw(f"; @launch grid=(256,1,1) block=(512,1,1) lds={LDS_BYTES}")
    a.raw('.amdgcn_target "amdgcn-amd-amdhsa--gfx950"')
    a.raw(".text")
    a.raw(f".globl {NAME}_kernel")
    a.raw(".p2align 8")
    a.raw(f".type {NAME}_kernel,@function")
    a.raw(f"{NAME}_kernel:")
    a("s_cmp_ge_u32 s2, 256")
    a("s_cbranch_scc1 L_end")
    a("s_load_dwordx2 s[40:41], s[0:1], 88")
    a("s_load_dwordx2 s[4:5], s[0:1], 0")
    a("s_load_dwordx2 s[16:17], s[0:1], 24")
    a("s_load_dwordx2 s[8:9], s[0:1], 8")
    a("s_load_dwordx4 s[44:47], s[0:1], 48")
    a("s_load_dwordx2 s[28:29], s[0:1], 64")
    a("s_load_dwordx2 s[12:13], s[0:1], 16")
    a("s_load_dwordx2 s[20:21], s[0:1], 32")
    a("s_load_dwordx2 s[32:33], s[0:1], 72")
    a("s_load_dwordx2 s[36:37], s[0:1], 80")
    sizes = {4: 2048, 8: 1 << 27, 12: 1 << 27, 16: 512 * 4096 * 2, 20: 4096 * 512 * 2, 24: 512 * 1376 * 2,
             28: 1376 * 512 * 2, 32: 2048, 36: 256, 40: WS_SIZE}
    a(f"v_lshrrev_b32 v{T}, 6, {vTid}")
    a(f"v_and_b32 {vLane}, 63, {vTid}")
    a(f"v_readfirstlane_b32 {sW}, v{T}")
    for base, sz in sizes.items():
        a(f"s_mov_b32 s{base+2}, 0x{sz:x}")
        a(f"s_mov_b32 s{base+3}, 0x00020000")
    a(f"s_and_b32 {sXCD}, s2, 7")
    a(f"s_lshr_b32 {sJ}, s2, 3")
    a(f"s_lshr_b32 {sT0}, {sJ}, 3")
    a(f"s_lshl_b32 {sH}, {sXCD}, 2")
    a(f"s_add_u32 {sH}, {sH}, {sT0}")
    a(f"s_bfe_u32 {sB}, {sJ}, 0x10002")
    a(f"s_and_b32 {sSP}, {sJ}, 3")
    a(f"s_lshl_b32 {sBH}, {sB}, 5")
    a(f"s_add_u32 {sBH}, {sBH}, {sH}")
    a(f"s_lshl_b32 {sP}, {sBH}, 2")
    a(f"s_add_u32 {sP}, {sP}, {sSP}")
    a(f"s_lshl_b32 {sSlice}, {sT0}, 3")
    a(f"s_add_u32 {sSlice}, {sSlice}, {sXCD}")
    a(f"s_lshl_b32 {sSlice}, {sSlice}, 3")
    a(f"s_and_b32 {sT1}, {sJ}, 7")
    a(f"s_add_u32 {sSlice}, {sSlice}, {sT1}")
    a(f"s_cmp_lt_u32 {sSlice}, 172")
    a(f"s_cselect_b32 {sFFv}, 0, 0x{OOB:x}")
    a(f"v_lshlrev_b32 {vOffK}, 4, {vLane}")
    a(f"v_lshrrev_b32 {vG}, 4, {vLane}")
    a(f"v_and_b32 {vC}, 15, {vLane}")
    a(f"v_lshlrev_b32 {vOffWq}, 13, {vG}")
    a(f"v_lshl_add_u32 {vOffWq}, {vC}, 4, {vOffWq}")
    a(f"v_lshlrev_b32 {vOffWo}, 10, {vG}")
    a(f"v_lshl_add_u32 {vOffWo}, {vC}, 4, {vOffWo}")
    if pattern == "gwg4":
        kstride = 32768
        a(f"s_lshl_b32 {sT1}, {sSP}, 3")
        a(f"s_add_u32 {sT1}, {sT1}, {sW}")
        a(f"s_lshl_b32 {sT1}, {sT1}, 10")
    elif pattern == "gwg1":
        kstride = 8192
        a(f"s_lshl_b32 {sT1}, {sSP}, 19")
        a(f"s_lshl_b32 {sT2}, {sW}, 10")
        a(f"s_add_u32 {sT1}, {sT1}, {sT2}")
    elif pattern == "wave":
        kstride = 1024
        a(f"s_lshl_b32 {sT1}, {sSP}, 19")
        a(f"s_lshl_b32 {sT2}, {sW}, 16")
        a(f"s_add_u32 {sT1}, {sT1}, {sT2}")
    a(f"s_lshl_b32 {sKoff}, {sBH}, 21")
    a(f"s_add_u32 {sKoff}, {sKoff}, {sT1}")
    a(f"s_mov_b32 {sVoff}, {sKoff}")
    a(f"s_lshl_b32 {sWQoff}, {sW}, 19")
    a(f"s_lshl_b32 {sT1}, {sH}, 8")
    a(f"s_add_u32 {sWQoff}, {sWQoff}, {sT1}")
    a(f"s_lshl_b32 {sWOoff}, {sH}, 17")
    a(f"s_lshr_b32 {sT1}, {sW}, 2")
    a(f"s_lshl_b32 {sT1}, {sT1}, 16")
    a(f"s_add_u32 {sWOoff}, {sWOoff}, {sT1}")
    a(f"s_and_b32 {sT2}, {sW}, 3")
    a(f"s_lshl_b32 {sT1}, {sT2}, 8")
    a(f"s_add_u32 {sWOoff}, {sWOoff}, {sT1}")
    a(f"s_lshl_b32 {sWDoff}, {sSlice}, 13")
    a(f"s_add_u32 {sWDoff}, {sWDoff}, {sT1}")
    a(f"s_lshl_b32 {sT1}, {sP}, 11")
    a(f"s_lshl_b32 {sT3}, {sW}, 10")
    a(f"s_add_u32 {sT1}, {sT1}, {sT3}")
    a(f"s_cmp_lt_u32 {sW}, 2")
    a(f"s_cselect_b32 {sT1}, {sT1}, 0x{OOB:x}")
    a(f"v_add_u32 {vYoff}, {sT1}, {vOffK}")
    a(f"s_lshl_b32 {sT1}, {sP}, 3")
    a(f"s_add_u32 {sT1}, {sT1}, 0x{WS_ST:x}")
    a(f"v_mov_b32 {vSToff}, {sT1}")
    a(f"v_mov_b32 v{T}, 0x{OOB:x}")
    a(f"v_cmp_eq_u32 vcc, 0, {vTid}")
    a(f"v_cndmask_b32 {vSToff}, v{T}, {vSToff}, vcc")
    a(f"s_lshl_b32 {sT1}, {sSlice}, 12")
    a(f"s_lshl_b32 {sT3}, {sW}, 9")
    a(f"s_add_u32 {sT1}, {sT1}, {sT3}")
    a(f"s_add_u32 {sT1}, {sT1}, 0x{WS_FF:x}")
    a(f"s_cmp_lt_u32 {sW}, 4")
    a(f"s_cselect_b32 {sT3}, {sFFv}, 0x{OOB:x}")
    a(f"s_or_b32 {sT1}, {sT1}, {sT3}")
    a(f"v_lshrrev_b32 v{T}, 1, {vG}")
    a(f"v_lshlrev_b32 v{T}, 11, v{T}")
    a(f"v_lshl_add_u32 v{T}, {vC}, 5, v{T}")
    a(f"v_and_b32 v{T+1}, 1, {vG}")
    a(f"v_lshl_add_u32 v{T}, v{T+1}, 4, v{T}")
    a(f"v_add_u32 {vFFoff}, {sT1}, v{T}")
    vWDoff = v(T + 2)
    a(f"v_add_u32 {vWDoff}, {sT3}, {vOffWo}")
    vGUoff = v(T + 3)
    a(f"s_mul_i32 {sT1}, {sT2}, {64*5504}")
    a(f"s_lshl_b32 {sT3}, {sSlice}, 4")
    a(f"s_add_u32 {sT1}, {sT1}, {sT3}")
    a(f"s_or_b32 {sT1}, {sT1}, {sFFv}")
    a(f"v_mul_u32_u24 {vGUoff}, 5504, {vLane}")
    a(f"v_add_u32 {vGUoff}, {sT1}, {vGUoff}")
    vXqoff = v(T + 4)
    a(f"s_lshl_b32 {sT1}, {sB}, 10")
    a(f"s_lshl_b32 {sT3}, {sW}, 7")
    a(f"s_add_u32 {sT1}, {sT1}, {sT3}")
    a(f"v_lshlrev_b32 {vXqoff}, 3, {vC}")
    a(f"v_lshl_add_u32 {vXqoff}, {vG}, 1, {vXqoff}")
    a(f"v_add_u32 {vXqoff}, {sT1}, {vXqoff}")
    vXfoff = v(T + 5)
    a(f"s_lshl_b32 {sT1}, {sT2}, 8")
    a(f"v_lshlrev_b32 {vXfoff}, 2, {vLane}")
    a(f"v_add_u32 {vXfoff}, {sT1}, {vXfoff}")
    SEN = T + 8
    for i in range(4):
        a(f"v_mov_b32 v{SEN+i}, -1")
    a("s_waitcnt lgkmcnt(0)")
    a(f"s_cmp_lt_u32 {sW}, 4")
    a("s_cselect_b32 s24, s44, s46")
    a("s_cselect_b32 s25, s45, s47")
    a(f"buffer_store_dwordx4 {vr(SEN)}, {vYoff}, {sWS}, 0 offen sc1")
    a(f"buffer_store_dwordx2 {vr(SEN,2)}, {vSToff}, {sWS}, 0 offen sc1")
    a(f"buffer_store_dwordx4 {vr(SEN)}, {vFFoff}, {sWS}, 0 offen sc1")
    X0, X1 = T + 12, T + 16
    vXq, vXf0, vXf1 = v(T + 20), v(T + 21), v(T + 22)
    a(f"buffer_load_dwordx4 {vr(X0)}, {vOffK}, {sX}, 0 offen", tag="x0")
    a(f"buffer_load_dwordx4 {vr(X1)}, {vOffK}, {sX}, 0 offen offset:1024", tag="x1")
    a(f"buffer_load_ushort {vXq}, {vXqoff}, {sX}, 0 offen", tag="xq")
    a(f"buffer_load_dword {vXf0}, {vXfoff}, {sX}, 0 offen", tag="xf0")
    a(f"buffer_load_dword {vXf1}, {vXfoff}, {sX}, 0 offen offset:1024", tag="xf1")

    order = [("wq", i) for i in range(16)] + [("k", i) for i in range(64)]
    vlist = [("v", i) for i in range(64)]
    order += vlist[:wo_at] + [("wo", i) for i in range(16)] + vlist[wo_at:]
    free = list(range(R))
    slot_of = {}
    state = {"next": 0}
    def issue_next():
        if state["next"] >= len(order) or not free:
            return False
        el = order[state["next"]]
        state["next"] += 1
        s = free.pop(0)
        slot_of[el] = s
        dst = vr(RING + 4 * s)
        kind, i = el
        if kind == "wq":
            a(f"buffer_load_dwordx4 {dst}, {vOffWq}, {sWQ}, {sWQoff} offen {wpol}".rstrip(), tag=el)
            if i < 15: a(f"s_add_u32 {sWQoff}, {sWQoff}, 32768")
        elif kind == "k":
            a(f"buffer_load_dwordx4 {dst}, {vOffK}, {sK}, {sKoff} offen {pol}".rstrip(), tag=el)
            if i < 63: a(f"s_add_u32 {sKoff}, {sKoff}, {kstride}")
        elif kind == "v":
            a(f"buffer_load_dwordx4 {dst}, {vOffK}, {sV}, {sVoff} offen {pol}".rstrip(), tag=el)
            if i < 63: a(f"s_add_u32 {sVoff}, {sVoff}, {kstride}")
        elif kind == "wo":
            a(f"buffer_load_dwordx4 {dst}, {vOffWo}, {sWO}, {sWOoff} offen {wpol}".rstrip(), tag=el)
            if i < 15: a(f"s_add_u32 {sWOoff}, {sWOoff}, 4096")
        return True
    def release(el):
        free.append(slot_of[el])
        issue_next()

    for _ in range(16):
        issue_next()
    GA, GB, WD0, WD1 = T + 24, T + 28, T + 32, T + 36
    a(f"buffer_load_dwordx4 {vr(GA)}, {vGUoff}, {sGU}, 0 offen", tag="ga")
    a(f"buffer_load_dwordx4 {vr(GB)}, {vGUoff}, {sGU}, 0 offen offset:2752", tag="gb")
    a(f"buffer_load_dwordx4 {vr(WD0)}, {vWDoff}, {sWD}, {sWDoff} offen", tag="wd0")
    a(f"s_add_u32 {sWDoff}, {sWDoff}, 4096")
    a(f"buffer_load_dwordx4 {vr(WD1)}, {vWDoff}, {sWD}, {sWDoff} offen", tag="wd1")
    while issue_next():
        pass

    a(f"s_mov_b32 {sLOG2E}, 0x{f2u(LOG2E):x}")
    a(f"s_mov_b32 {sSCALE}, 0x{f2u(128 ** -0.5):x}")
    a(f"s_mov_b32 {sHI}, 0xffff0000")
    a(f"s_mov_b32 s64, 0xaaaaaaaa")
    a(f"s_mov_b32 s65, 0xaaaaaaaa")
    a(f"s_mov_b32 s66, 0xcccccccc")
    a(f"s_mov_b32 s67, 0xcccccccc")
    a(f"s_cmp_eq_u32 {sB}, 1")
    a(f"s_cselect_b64 {sBmask}, -1, 0")
    t0, t1, t2, t3 = v(T), v(T + 1), v(T + 6), v(T + 7)
    a(f"v_lshrrev_b32 {t0}, 3, {vC}")
    a(f"v_mul_u32_u24 {t0}, 0x0202, {t0}")
    a(f"v_add_u32 {t0}, 0x0100, {t0}")
    a(f"v_and_b32 {t1}, 1, {vC}")
    a(f"v_lshlrev_b32 {t1}, 4, {t1}")
    a(f"v_lshlrev_b32 {t0}, {t1}, {t0}")
    a(f"v_mov_b32 {t2}, 0x0c0c0000")
    a(f"v_lshrrev_b32 {t2}, {t1}, {t2}")
    a(f"v_or_b32 {t0}, {t0}, {t2}")
    a(f"v_bfe_u32 {t3}, {vC}, 1, 2")
    a(f"v_mov_b32 {t2}, 0x0c0c0c0c")
    for j in range(4):
        a(f"v_cmp_eq_u32 vcc, {j}, {t3}")
        a(f"v_cndmask_b32 {vSel[j]}, {t2}, {t0}, vcc")
    a(f"v_and_b32 {t0}, 1, {vG}")
    a(f"v_lshlrev_b32 {t0}, 2, {t0}")
    a(f"v_lshl_add_u32 {t0}, {vC}, 3, {t0}")
    a(f"v_lshrrev_b32 {t1}, 1, {vG}")
    a(f"v_add_u32 {vD0}, {t0}, {t1}")

    DPPM = "row_mask:0xf bank_mask:0xf"
    def allreduce(op, regs, tmps):
        for ctl in ("quad_perm:[1,0,3,2]", "quad_perm:[2,3,0,1]", "row_half_mirror", "row_mirror"):
            for r in regs:
                a(f"{op}_dpp {r}, {r}, {r} {ctl} {DPPM}")
        for sw in ("v_permlane16_swap_b32", "v_permlane32_swap_b32"):
            for r, t in zip(regs, tmps):
                a(f"v_mov_b32 {t}, {r}")
            for r, t in zip(regs, tmps):
                a(f"{sw} {r}, {t}")
            for r, t in zip(regs, tmps):
                a(f"{op} {r}, {r}, {t}")
    def unpack(src, lo, hi):
        a(f"v_lshlrev_b32 {lo}, 16, {src}")
        a(f"v_and_b32 {hi}, {sHI}, {src}")

    F = T + 40
    a.wait_vm("x1")
    for b, X in enumerate((X0, X1)):
        for j in range(4):
            unpack(v(X + j), v(F + 8 * b + 2 * j), v(F + 8 * b + 2 * j + 1))
    vSum = [v(T + 56), v(T + 57)]
    vTmp = [v(T + 58), v(T + 59)]
    for b in range(2):
        a(f"v_add_f32 {vSum[b]}, {v(F+8*b)}, {v(F+8*b+1)}")
        a(f"v_add_f32 {vTmp[b]}, {v(F+8*b+2)}, {v(F+8*b+3)}")
    for b in range(2):
        a(f"v_add_f32 {vSum[b]}, {vSum[b]}, {v(F+8*b+4)}")
        a(f"v_add_f32 {vTmp[b]}, {vTmp[b]}, {v(F+8*b+5)}")
    for b in range(2):
        a(f"v_add_f32 {vSum[b]}, {vSum[b]}, {v(F+8*b+6)}")
        a(f"v_add_f32 {vTmp[b]}, {vTmp[b]}, {v(F+8*b+7)}")
    for b in range(2):
        a(f"v_add_f32 {vSum[b]}, {vSum[b]}, {vTmp[b]}")
    allreduce("v_add_f32", vSum, vTmp)
    vMean = [v(T + 60), v(T + 61)]
    for b in range(2):
        a(f"v_mul_f32 {vMean[b]}, 0x{f2u(1/512):x}, {vSum[b]}")
    for b in range(2):
        for k in range(8):
            a(f"v_sub_f32 {v(F+8*b+k)}, {v(F+8*b+k)}, {vMean[b]}")
    for b in range(2):
        a(f"v_mul_f32 {vSum[b]}, {v(F+8*b)}, {v(F+8*b)}")
        a(f"v_mul_f32 {vTmp[b]}, {v(F+8*b+1)}, {v(F+8*b+1)}")
    for k in range(2, 8, 2):
        for b in range(2):
            a(f"v_fmac_f32 {vSum[b]}, {v(F+8*b+k)}, {v(F+8*b+k)}")
            a(f"v_fmac_f32 {vTmp[b]}, {v(F+8*b+k+1)}, {v(F+8*b+k+1)}")
    for b in range(2):
        a(f"v_add_f32 {vSum[b]}, {vSum[b]}, {vTmp[b]}")
    allreduce("v_add_f32", vSum, vTmp)
    for b in range(2):
        a(f"v_mul_f32 {vSum[b]}, 0x{f2u(1/512):x}, {vSum[b]}")
    pk = v(T + 62)
    vRd = [v(T + 63), v(T + 64)]
    a(f"v_cvt_pk_bf16_f32 {pk}, {vMean[0]}, {vMean[1]}")
    unpack(pk, vMean[0], vMean[1])
    a(f"v_cvt_pk_bf16_f32 {pk}, {vSum[0]}, {vSum[1]}")
    unpack(pk, vSum[0], vSum[1])
    for b in range(2):
        a(f"v_add_f32 {vSum[b]}, 0x{f2u(1e-5):x}, {vSum[b]}")
    a(f"v_cvt_pk_bf16_f32 {pk}, {vSum[0]}, {vSum[1]}")
    unpack(pk, vSum[0], vSum[1])
    for b in range(2):
        a(f"v_sqrt_f32 {vSum[b]}, {vSum[b]}")
    a(f"v_cvt_pk_bf16_f32 {pk}, {vSum[0]}, {vSum[1]}")
    unpack(pk, vSum[0], vSum[1])
    for b in range(2):
        a(f"v_rcp_f32 {vRd[b]}, {vSum[b]}")
    a.wait_vm("xf1")
    mq, rq = v(F), v(F + 1)
    a(f"v_cndmask_b32 {mq}, {vMean[0]}, {vMean[1]}, {sBmask}")
    a(f"v_cndmask_b32 {rq}, {vRd[0]}, {vRd[1]}, {sBmask}")
    a(f"v_lshlrev_b32 {vXq}, 16, {vXq}")
    a(f"v_sub_f32 {vXq}, {vXq}, {mq}")
    a(f"v_cvt_pk_bf16_f32 {vXq}, {vXq}, {vXq}")
    a(f"v_lshlrev_b32 {vXq}, 16, {vXq}")
    a(f"v_mul_f32 {vXq}, {vXq}, {rq}")
    a(f"v_cvt_pk_bf16_f32 {vCQ}, {vXq}, 0")
    vXN = [vXf0, vXf1]
    for b in range(2):
        lo, hi = v(F + 2 + 2 * b), v(F + 3 + 2 * b)
        unpack(vXN[b], lo, hi)
        a(f"v_sub_f32 {lo}, {lo}, {vMean[b]}")
        a(f"v_sub_f32 {hi}, {hi}, {vMean[b]}")
        a(f"v_cvt_pk_bf16_f32 {vXN[b]}, {lo}, {hi}")
        unpack(vXN[b], lo, hi)
        a(f"v_mul_f32 {lo}, {lo}, {vRd[b]}")
        a(f"v_mul_f32 {hi}, {hi}, {vRd[b]}")
        a(f"v_cvt_pk_bf16_f32 {vXN[b]}, {lo}, {hi}")

    def prepA(coef, n, buf):
        a(f"v_mov_b32_dpp {vBc[buf]}, {coef} row_newbcast:{n} {DPPM}")
        for j in range(4):
            a(f"v_perm_b32 v{vA[buf]+j}, {vBc[buf]}, {vBc[buf]}, {vSel[j]}")
    def diag_seq(items, acc, first_zero=True):
        prepA(items[0][0], items[0][1], 0)
        for idx, (coef, n, data, tag, done) in enumerate(items):
            buf = idx & 1
            if idx + 1 < len(items):
                prepA(items[idx + 1][0], items[idx + 1][1], buf ^ 1)
            if tag is not None:
                a.wait_vm(tag)
            d = data() if callable(data) else data
            c = "0" if (idx == 0 and first_zero) else vr(acc)
            a(f"v_mfma_f32_16x16x32_bf16 {vr(acc)}, {vr(vA[buf])}, {vr(d)}, {c}")
            if done:
                done()

    items = []
    for i in range(16):
        el = ("wq", i)
        items.append((vCQ, i, (lambda el=el: RING + 4 * slot_of[el]), el, (lambda el=el: release(el))))
    diag_seq(items, ACC)
    FR = P0
    a.wait_vm("gb")
    a(f"s_mov_b32 {sT0}, 0x05040100")
    a(f"s_mov_b32 {sT1}, 0x07060302")
    for j in range(4):
        plo, phi = v(F + 8 + 2 * j), v(F + 9 + 2 * j)
        a(f"v_perm_b32 {plo}, {v(GB+j)}, {v(GA+j)}, {sT0}")
        a(f"v_perm_b32 {phi}, {v(GB+j)}, {v(GA+j)}, {sT1}")
    for b in range(2):
        for e in range(8):
            a(f"v_dot2_f32_bf16 {v(FR+8*b+e)}, {v(F+8+e)}, {vXN[b]}, 0")
    vLq = v(F)
    a(f"v_lshlrev_b32 {vLq}, 5, {vC}")
    a(f"v_lshl_add_u32 {vLq}, {vG}, 4, {vLq}")
    a(f"s_lshl_b32 {sT2}, {sW}, 9")
    a(f"v_add_u32 {vLq}, {sT2}, {vLq}")
    a("s_mov_b32 exec_hi, 0")
    a(f"ds_write_b128 {vLq}, {vr(ACC)} offset:{LDSQ}")
    a("s_mov_b32 exec_hi, -1")
    for i in range(8):
        a(f"v_permlane32_swap_b32 {v(FR+i)}, {v(FR+i+8)}")
    for i in range(8):
        a(f"v_add_f32 {v(FR+i)}, {v(FR+i)}, {v(FR+i+8)}")
    for i in range(4):
        a(f"v_permlane16_swap_b32 {v(FR+i)}, {v(FR+i+4)}")
    for i in range(4):
        a(f"v_add_f32 {v(FR+i)}, {v(FR+i)}, {v(FR+i+4)}")
    for i in range(2):
        a(f"v_add_f32_dpp {v(FR+i)}, {v(FR+i)}, {v(FR+i)} row_ror:8 row_mask:0xf bank_mask:0x3")
    for i in range(2):
        a(f"v_add_f32_dpp {v(FR+i)}, {v(FR+i+2)}, {v(FR+i+2)} row_ror:8 row_mask:0xf bank_mask:0xc")
    a(f"v_add_f32_dpp {v(FR)}, {v(FR)}, {v(FR)} row_half_mirror row_mask:0xf bank_mask:0x5")
    a(f"v_add_f32_dpp {v(FR)}, {v(FR+1)}, {v(FR+1)} row_half_mirror row_mask:0xf bank_mask:0xa")
    a(f"v_add_f32_dpp {v(FR)}, {v(FR)}, {v(FR)} quad_perm:[1,0,3,2] {DPPM}")
    a(f"v_add_f32_dpp {v(FR)}, {v(FR)}, {v(FR)} quad_perm:[2,3,0,1] {DPPM}")
    vLf = v(F + 1)
    a(f"v_lshrrev_b32 {vLf}, 2, {vLane}")
    a(f"v_lshlrev_b32 {vLf}, 5, {vLf}")
    a(f"s_lshl_b32 {sT2}, {sW}, 2")
    a(f"v_add_u32 {vLf}, {sT2}, {vLf}")
    a(f"ds_write_b32 {vLf}, {v(FR)} offset:{LDSF}")
    a("s_waitcnt lgkmcnt(0)")
    a("s_barrier")
    vOne = v(F + 2)
    vCo = v(F + 3)
    a(f"v_mov_b32 {vOne}, 1")
    a(f"v_mov_b32 {vCo}, 0x{OOB:x}")
    a(f"v_cmp_eq_u32 vcc, 0, {vTid}")
    a(f"v_cndmask_b32 {vCo}, {vCo}, 0, vcc")
    a(f"buffer_atomic_add {vOne}, {vCo}, {sDBG}, 0 offen sc1")
    QS = F + 4
    QS = ((T + 44 + 3) // 4) * 4
    vLq2 = v(F)
    a(f"v_lshlrev_b32 {vLq2}, 5, {vC}")
    a(f"ds_read_b128 {vr(QS)}, {vLq2} offset:{LDSQ}")
    a(f"ds_read_b128 {vr(QS+4)}, {vLq2} offset:{LDSQ+16}")
    RB = [QS + 8, QS + 16]
    bufs = [QS + 8, QS + 16, P0, P0 + 8]
    w = 1
    while w < 8:
        batch = list(range(w, min(8, w + 4)))
        for k, ww in enumerate(batch):
            a(f"ds_read_b128 {vr(bufs[k])}, {vLq2} offset:{LDSQ+ww*512}")
            a(f"ds_read_b128 {vr(bufs[k]+4)}, {vLq2} offset:{LDSQ+ww*512+16}")
        a("s_waitcnt lgkmcnt(0)")
        for k, ww in enumerate(batch):
            for e in range(8):
                a(f"v_add_f32 {v(QS+e)}, {v(QS+e)}, {v(bufs[k]+e)}")
        w += 4
    for j in range(4):
        a(f"v_cvt_pk_bf16_f32 {vQ[j]}, {v(QS+2*j)}, {v(QS+2*j+1)}")
    vLh = v(F)
    a(f"v_and_b32 {vLh}, 1, {vC}")
    a(f"v_lshl_add_u32 {vLh}, {vLh}, 2, {vG}")
    a(f"v_lshlrev_b32 {vLh}, 5, {vLh}")
    HB = P0
    for b in range(2):
        a(f"ds_read_b128 {vr(HB+8*b)}, {vLh} offset:{LDSF+b*256}")
        a(f"ds_read_b128 {vr(HB+8*b+4)}, {vLh} offset:{LDSF+b*256+16}")
    a("s_waitcnt lgkmcnt(0)")
    for q4 in range(4):
        r = HB + 4 * q4
        a(f"v_add_f32 {v(r)}, {v(r)}, {v(r+1)}")
        a(f"v_add_f32 {v(r+2)}, {v(r+2)}, {v(r+3)}")
    for q4 in range(4):
        r = HB + 4 * q4
        a(f"v_add_f32 {v(r)}, {v(r)}, {v(r+2)}")
    ga = [v(HB + 1), v(HB + 2)]
    gu = [v(HB + 5), v(HB + 6)]
    a(f"v_cvt_pk_bf16_f32 {v(HB+3)}, {v(HB)}, {v(HB+8)}")
    a(f"v_cvt_pk_bf16_f32 {v(HB+7)}, {v(HB+4)}, {v(HB+12)}")
    unpack(v(HB + 3), ga[0], ga[1])
    unpack(v(HB + 7), gu[0], gu[1])
    gz = [v(HB + 9), v(HB + 10)]
    K1 = 0.044715
    K0 = -2.0 * 0.7978845608028654 * LOG2E
    for b in range(2):
        a(f"v_mul_f32 {gz[b]}, {ga[b]}, {ga[b]}")
    for b in range(2):
        a(f"v_mul_f32 {gz[b]}, {gz[b]}, {ga[b]}")
    a(f"s_mov_b32 {sT0}, 0x{f2u(K1):x}")
    for b in range(2):
        a(f"v_fma_f32 {gz[b]}, {gz[b]}, {sT0}, {ga[b]}")
    for b in range(2):
        a(f"v_mul_f32 {gz[b]}, 0x{f2u(K0):x}, {gz[b]}")
    for b in range(2):
        a(f"v_exp_f32 {gz[b]}, {gz[b]}")
    for b in range(2):
        a(f"v_add_f32 {gz[b]}, 1.0, {gz[b]}")
    for b in range(2):
        a(f"v_rcp_f32 {gz[b]}, {gz[b]}")
    for b in range(2):
        a(f"v_mul_f32 {gz[b]}, {gz[b]}, {ga[b]}")
    a(f"v_cvt_pk_bf16_f32 {v(HB+3)}, {gz[0]}, {gz[1]}")
    unpack(v(HB + 3), gz[0], gz[1])
    for b in range(2):
        a(f"v_mul_f32 {gz[b]}, {gz[b]}, {gu[b]}")
    vCH = v(HB + 11)
    a(f"v_cvt_pk_bf16_f32 {vCH}, {gz[0]}, {gz[1]}")
    diag_seq([(vCH, 0, WD0, "wd0", None), (vCH, 1, WD1, "wd1", None)], ACC)
    FS = HB + 12
    for j in range(4):
        a(f"v_min_u32 {v(FS+j)}, -2, {v(ACC+j)}")
    a(f"buffer_store_dwordx4 {vr(FS)}, {vFFoff}, {sWS}, 0 offen sc1")

    for G in range(4):
        for i in range(16):
            el = ("k", G * 16 + i)
            a.wait_vm(el)
            d = RING + 4 * slot_of[el]
            a(f"v_dot2_f32_bf16 {v(P0+i)}, {v(d)}, {vQ[0]}, 0")
            for j in range(1, 4):
                a(f"v_dot2_f32_bf16 {v(P0+i)}, {v(d+j)}, {vQ[j]}, {v(P0+i)}")
            release(el)
        for j in range(8):
            a(f"v_add_f32_dpp {v(P0+j)}, {v(P0+j)}, {v(P0+j)} row_ror:8 row_mask:0xf bank_mask:0x3")
        for j in range(8):
            a(f"v_add_f32_dpp {v(P0+j)}, {v(P0+j+8)}, {v(P0+j+8)} row_ror:8 row_mask:0xf bank_mask:0xc")
        for j in range(4):
            a(f"v_add_f32_dpp {v(P0+j)}, {v(P0+j)}, {v(P0+j)} row_half_mirror row_mask:0xf bank_mask:0x5")
        for j in range(4):
            a(f"v_add_f32_dpp {v(P0+j)}, {v(P0+j+4)}, {v(P0+j+4)} row_half_mirror row_mask:0xf bank_mask:0xa")
        for j in range(4):
            a(f"v_add_f32_dpp {v(P0+j)}, {v(P0+j)}, {v(P0+j)} quad_perm:[1,0,3,2] {DPPM}")
        a(f"v_cndmask_b32 {v(P0)}, {v(P0)}, {v(P0+1)}, {sOdd}")
        a(f"v_cndmask_b32 {v(P0+2)}, {v(P0+2)}, {v(P0+3)}, {sOdd}")
        a(f"v_add_f32_dpp {v(P0)}, {v(P0)}, {v(P0)} quad_perm:[2,3,0,1] {DPPM}")
        a(f"v_add_f32_dpp {v(P0+2)}, {v(P0+2)}, {v(P0+2)} quad_perm:[2,3,0,1] {DPPM}")
        a(f"v_cndmask_b32 {vS[G]}, {v(P0)}, {v(P0+2)}, {sTwo}")
    r01, r23 = v(T), v(T + 1)
    a(f"v_cvt_pk_bf16_f32 {r01}, {vS[0]}, {vS[1]}")
    a(f"v_cvt_pk_bf16_f32 {r23}, {vS[2]}, {vS[3]}")
    unpack(r01, vS[0], vS[1])
    unpack(r23, vS[2], vS[3])
    for G in range(4):
        a(f"v_mul_f32 {vS[G]}, {sSCALE}, {vS[G]}")
    a(f"v_cvt_pk_bf16_f32 {r01}, {vS[0]}, {vS[1]}")
    a(f"v_cvt_pk_bf16_f32 {r23}, {vS[2]}, {vS[3]}")
    unpack(r01, vS[0], vS[1])
    unpack(r23, vS[2], vS[3])
    a(f"v_max_f32 {vM}, {vS[0]}, {vS[1]}")
    a(f"v_max3_f32 {vM}, {vS[2]}, {vS[3]}, {vM}")
    allreduce("v_max_f32", [vM], [r01])
    for G in range(4):
        a(f"v_sub_f32 {vS[G]}, {vS[G]}, {vM}")
    for G in range(4):
        a(f"v_mul_f32 {vS[G]}, {sLOG2E}, {vS[G]}")
    for G in range(4):
        a(f"v_exp_f32 {vS[G]}, {vS[G]}")
    a(f"v_add_f32 {vL}, {vS[0]}, {vS[1]}")
    a(f"v_add_f32 {r23}, {vS[2]}, {vS[3]}")
    a(f"v_add_f32 {vL}, {vL}, {r23}")
    def pack_hilo(x, t):
        a(f"v_cvt_pk_bf16_f32 {t}, {x}, {x}")
        a(f"v_lshlrev_b32 {t}, 16, {t}")
        a(f"v_sub_f32 {t}, {x}, {t}")
        a(f"v_cvt_pk_bf16_f32 {x}, {x}, {t}")
    for G in range(4):
        pack_hilo(vS[G], v(T + 2 + G))
    allreduce("v_add_f32", [vL], [r01])
    vLml = v(T + 6)
    a(f"s_lshl_b32 {sT0}, {sW}, 3")
    a(f"v_mov_b32 {vLml}, {sT0}")
    a(f"ds_write_b64 {vLml}, v[38:39] offset:{LDSML}")
    items = []
    for i in range(64):
        el = ("v", i)
        items.append((vS[i // 16], i % 16, (lambda el=el: RING + 4 * slot_of[el]), el, (lambda el=el: release(el))))
    diag_seq(items, ACC)
    def hilo_sum(acc):
        a(f"v_permlane32_swap_b32 {v(acc)}, {v(acc+1)}")
        a(f"v_permlane32_swap_b32 {v(acc+2)}, {v(acc+3)}")
        a(f"v_add_f32 {v(acc)}, {v(acc)}, {v(acc+1)}")
        a(f"v_add_f32 {v(acc+2)}, {v(acc+2)}, {v(acc+3)}")
    vLo = v(T)
    a(f"s_lshl_b32 {sT0}, {sW}, 9")
    a(f"v_lshlrev_b32 {vLo}, 2, {vD0}")
    a(f"v_add_u32 {vLo}, {sT0}, {vLo}")
    vRo, vRml = v(T + 1), v(T + 2)
    a(f"s_lshr_b32 {sT1}, {sW}, 2")
    a(f"s_lshl_b32 {sT1}, {sT1}, 8")
    a(f"v_lshlrev_b32 {vRo}, 4, {vC}")
    a(f"v_lshl_add_u32 {vRo}, {vG}, 2, {vRo}")
    a(f"v_add_u32 {vRo}, {sT1}, {vRo}")
    a(f"v_and_b32 {vRml}, 7, {vLane}")
    a(f"v_lshlrev_b32 {vRml}, 3, {vRml}")
    hilo_sum(ACC)
    a(f"ds_write_b32 {vLo}, {v(ACC)} offset:{LDSO}")
    a(f"ds_write_b32 {vLo}, {v(ACC+2)} offset:{LDSO+8}")
    a("s_waitcnt lgkmcnt(0)")
    a("s_barrier")
    ML = T + 4
    OW = T + 8
    a(f"ds_read_b64 {vr(ML,2)}, {vRml} offset:{LDSML}")
    for w in range(8):
        a(f"ds_read_b32 {v(OW+w)}, {vRo} offset:{LDSO+w*512}")
    a("s_waitcnt lgkmcnt(8)")
    a(f"v_max_f32_dpp {vM}, {v(ML)}, {v(ML)} quad_perm:[1,0,3,2] {DPPM}")
    a(f"v_max_f32_dpp {vM}, {vM}, {vM} quad_perm:[2,3,0,1] {DPPM}")
    a(f"v_max_f32_dpp {vM}, {vM}, {vM} row_half_mirror {DPPM}")
    sc = v(T + 6)
    a(f"v_sub_f32 {sc}, {v(ML)}, {vM}")
    a(f"v_mul_f32 {sc}, {sLOG2E}, {sc}")
    a(f"v_exp_f32 {sc}, {sc}")
    vO = v(T + 7)
    a(f"v_mov_b32 {vO}, 0")
    a(f"v_mul_f32 {vL}, {sc}, {v(ML+1)}")
    a("s_waitcnt lgkmcnt(0)")
    for w in range(8):
        a(f"v_fmac_f32_dpp {vO}, {sc}, {v(OW+w)} row_newbcast:{w} {DPPM}")
    pack_hilo(vO, v(T + 3))
    a(f"v_add_f32_dpp {vL}, {vL}, {vL} quad_perm:[1,0,3,2] {DPPM}")
    a(f"v_add_f32_dpp {vL}, {vL}, {vL} quad_perm:[2,3,0,1] {DPPM}")
    a(f"v_add_f32_dpp {vL}, {vL}, {vL} row_half_mirror {DPPM}")
    items = []
    for i in range(16):
        el = ("wo", i)
        items.append((vO, i, (lambda el=el: RING + 4 * slot_of[el]), el, None))
    diag_seq(items, ACC)
    a(f"v_min_u32 {vM}, -2, {vM}")
    a(f"v_min_u32 {vL}, -2, {vL}")
    a(f"buffer_store_dwordx2 v[38:39], {vSToff}, {sWS}, 0 offen sc1")
    vLy, vRy = v(T), v(T + 1)
    a(f"s_lshl_b32 {sT0}, {sW}, 9")
    a(f"v_lshlrev_b32 {vLy}, 2, {vD0}")
    a(f"v_add_u32 {vLy}, {sT0}, {vLy}")
    a(f"v_and_b32 {vRy}, 127, {vTid}")
    a(f"v_lshlrev_b32 {vRy}, 4, {vRy}")
    hilo_sum(ACC)
    a(f"ds_write_b32 {vLy}, {v(ACC)} offset:{LDSY}")
    a(f"ds_write_b32 {vLy}, {v(ACC+2)} offset:{LDSY+8}")
    a("s_waitcnt lgkmcnt(0)")
    a("s_barrier")
    Y0, Y1 = T + 4, T + 8
    a(f"ds_read_b128 {vr(Y0)}, {vRy} offset:{LDSY}")
    a(f"ds_read_b128 {vr(Y1)}, {vRy} offset:{LDSY+2048}")
    a("s_waitcnt lgkmcnt(0)")
    for j in range(4):
        a(f"v_add_f32 {v(Y0+j)}, {v(Y0+j)}, {v(Y1+j)}")
    for j in range(4):
        a(f"v_min_u32 {v(Y0+j)}, -2, {v(Y0+j)}")
    a(f"buffer_store_dwordx4 {vr(Y0)}, {vYoff}, {sWS}, 0 offen sc1")
    a(f"s_cmp_lt_u32 {sJ}, 24")
    a("s_cbranch_scc1 L_end")
    sKk, sBk, sCol = sT0, sT1, sT2
    a(f"s_sub_u32 {sKk}, {sJ}, 24")
    a(f"s_lshl_b32 {sKk}, {sKk}, 3")
    a(f"s_add_u32 {sKk}, {sKk}, {sXCD}")
    a(f"s_lshr_b32 {sBk}, {sKk}, 5")
    a(f"s_and_b32 {sCol}, {sKk}, 31")
    a(f"s_lshl_b32 {sCol}, {sCol}, 4")
    vPl, vQ4 = v(T + 12), v(T + 13)
    vYa, vSa, vFa, vFb, vXa, vZero = v(T + 14), v(T + 15), v(T + 16), v(T + 17), v(T + 18), v(T + 19)
    a(f"v_lshrrev_b32 {vPl}, 2, {vTid}")
    a(f"v_and_b32 {vQ4}, 3, {vTid}")
    a(f"s_lshl_b32 {sT3}, {sBk}, 18")
    a(f"s_lshl_b32 {sCnt}, {sCol}, 2")
    a(f"s_add_u32 {sT3}, {sT3}, {sCnt}")
    a(f"v_lshlrev_b32 {vYa}, 11, {vPl}")
    a(f"v_lshl_add_u32 {vYa}, {vQ4}, 4, {vYa}")
    a(f"v_add_u32 {vYa}, {sT3}, {vYa}")
    a(f"s_lshl_b32 {sT3}, {sBk}, 10")
    a(f"s_add_u32 {sT3}, {sT3}, 0x{WS_ST:x}")
    a(f"v_lshlrev_b32 {vSa}, 3, {vPl}")
    a(f"v_add_u32 {vSa}, {sT3}, {vSa}")
    a(f"s_lshl_b32 {sT3}, {sBk}, 11")
    a(f"s_add_u32 {sT3}, {sT3}, {sCnt}")
    a(f"s_add_u32 {sT3}, {sT3}, 0x{WS_FF:x}")
    a(f"v_lshlrev_b32 {vFa}, 12, {vPl}")
    a(f"v_lshl_add_u32 {vFa}, {vQ4}, 4, {vFa}")
    a(f"v_add_u32 {vFa}, {sT3}, {vFa}")
    a(f"v_add_u32 {vFb}, 0x{128*4096:x}, {vFa}")
    a(f"v_mov_b32 {vZero}, 0x{OOB:x}")
    a(f"v_cmp_gt_u32 vcc, 44, {vPl}")
    a(f"v_cndmask_b32 {vFb}, {vZero}, {vFb}, vcc")
    a(f"s_lshl_b32 {sT3}, {sBk}, 10")
    a(f"s_lshl_b32 {sCnt}, {sCol}, 1")
    a(f"s_add_u32 {sT3}, {sT3}, {sCnt}")
    a(f"v_lshlrev_b32 {vXa}, 1, {vC}")
    a(f"v_add_u32 {vXa}, {sT3}, {vXa}")
    vXv = v(T + 20)
    a(f"buffer_load_ushort {vXv}, {vXa}, {sX}, 0 offen")
    a(f"v_mov_b32 {vZero}, 0")
    vCv = v(T + 21)
    a(f"s_mov_b32 {sCnt}, 0")
    a.label("L_cnt")
    a(f"buffer_load_dword {vCv}, {vZero}, {sDBG}, 0 offen sc1")
    a(f"s_add_u32 {sCnt}, {sCnt}, 1")
    a.wait_vm_all()
    a(f"v_readfirstlane_b32 {sT3}, {vCv}")
    a(f"s_cmp_gt_u32 {sCnt}, 400000")
    a("s_cbranch_scc1 L_cnt_done")
    a(f"s_cmp_lt_u32 {sT3}, 256")
    a("s_cbranch_scc1 L_cnt")
    a.label("L_cnt_done")
    FA, FB = T + 24, T + 28
    vChk = v(T + 22)
    a.label("L_ff")
    a(f"buffer_load_dwordx4 {vr(FA)}, {vFa}, {sWS}, 0 offen sc1")
    a(f"buffer_load_dwordx4 {vr(FB)}, {vFb}, {sWS}, 0 offen sc1")
    a(f"s_add_u32 {sCnt}, {sCnt}, 1")
    a.wait_vm_all()
    a(f"v_max3_u32 {vChk}, {v(FA)}, {v(FA+1)}, {v(FA+2)}")
    a(f"v_max3_u32 {vChk}, {vChk}, {v(FA+3)}, {v(FB)}")
    a(f"v_max3_u32 {vChk}, {vChk}, {v(FB+1)}, {v(FB+2)}")
    a(f"v_max_u32 {vChk}, {vChk}, {v(FB+3)}")
    a(f"v_cmp_eq_u32 vcc, -1, {vChk}")
    a(f"s_cmp_gt_u32 {sCnt}, 400000")
    a("s_cbranch_scc1 L_ff_done")
    a("s_cmp_lg_u64 vcc, 0")
    a("s_cbranch_scc1 L_ff")
    a.label("L_ff_done")
    def reduce4(Y):
        a(f"v_permlane32_swap_b32 {v(Y)}, {v(Y+2)}")
        a(f"v_permlane32_swap_b32 {v(Y+1)}, {v(Y+3)}")
        a(f"v_add_f32 {v(Y)}, {v(Y)}, {v(Y+2)}")
        a(f"v_add_f32 {v(Y+1)}, {v(Y+1)}, {v(Y+3)}")
        a(f"v_permlane16_swap_b32 {v(Y)}, {v(Y+1)}")
        a(f"v_add_f32 {v(Y)}, {v(Y)}, {v(Y+1)}")
        a(f"v_add_f32_dpp {v(Y)}, {v(Y)}, {v(Y)} row_ror:4 {DPPM}")
        a(f"v_add_f32_dpp {v(Y)}, {v(Y)}, {v(Y)} row_ror:8 {DPPM}")
    for j in range(4):
        a(f"v_add_f32 {v(FA+j)}, {v(FA+j)}, {v(FB+j)}")
    reduce4(FA)
    vLr = v(T + 23)
    a(f"v_lshl_add_u32 {vLr}, {vQ4}, 2, {vG}")
    a(f"v_lshlrev_b32 {vLr}, 5, {vLr}")
    a(f"s_lshl_b32 {sT3}, {sW}, 2")
    a(f"v_add_u32 {vLr}, {sT3}, {vLr}")
    a(f"ds_write_b32 {vLr}, {v(FA)} offset:{LDSR+512}")
    YA, SA = T + 32, T + 36
    a.label("L_y")
    a(f"buffer_load_dwordx4 {vr(YA)}, {vYa}, {sWS}, 0 offen sc1")
    a(f"buffer_load_dwordx2 {vr(SA,2)}, {vSa}, {sWS}, 0 offen sc1")
    a(f"s_add_u32 {sCnt}, {sCnt}, 1")
    a.wait_vm_all()
    a(f"v_max3_u32 {vChk}, {v(YA)}, {v(YA+1)}, {v(YA+2)}")
    a(f"v_max3_u32 {vChk}, {vChk}, {v(YA+3)}, {v(SA)}")
    a(f"v_max_u32 {vChk}, {vChk}, {v(SA+1)}")
    a(f"v_cmp_eq_u32 vcc, -1, {vChk}")
    a(f"s_cmp_gt_u32 {sCnt}, 400000")
    a("s_cbranch_scc1 L_y_done")
    a("s_cmp_lg_u64 vcc, 0")
    a("s_cbranch_scc1 L_y")
    a.label("L_y_done")
    mh, ee, zz = v(T + 38), v(T + 39), v(T + 40)
    a(f"v_max_f32_dpp {mh}, {v(SA)}, {v(SA)} row_ror:4 {DPPM}")
    a(f"v_max_f32_dpp {mh}, {mh}, {mh} row_ror:8 {DPPM}")
    a(f"v_sub_f32 {ee}, {v(SA)}, {mh}")
    a(f"v_mul_f32 {ee}, {sLOG2E}, {ee}")
    a(f"v_exp_f32 {ee}, {ee}")
    a(f"v_mul_f32 {zz}, {ee}, {v(SA+1)}")
    a(f"v_add_f32_dpp {zz}, {zz}, {zz} row_ror:4 {DPPM}")
    a(f"v_add_f32_dpp {zz}, {zz}, {zz} row_ror:8 {DPPM}")
    a(f"v_rcp_f32 {zz}, {zz}")
    a(f"v_mul_f32 {ee}, {ee}, {zz}")
    for j in range(4):
        a(f"v_mul_f32 {v(YA+j)}, {v(YA+j)}, {ee}")
    reduce4(YA)
    a(f"ds_write_b32 {vLr}, {v(YA)} offset:{LDSR}")
    a("s_waitcnt lgkmcnt(0)")
    a("s_barrier")
    a(f"s_cmp_lg_u32 {sW}, 0")
    a("s_cbranch_scc1 L_end")
    vRr = v(T + 23)
    a(f"v_lshlrev_b32 {vRr}, 5, {vC}")
    RS = T + 24
    for k in range(4):
        off = LDSR + (k >> 1) * 512 + (k & 1) * 16
        a(f"ds_read_b128 {vr(RS+4*k)}, {vRr} offset:{off}")
    a("s_waitcnt lgkmcnt(0)")
    for k in range(4):
        r = RS + 4 * k
        a(f"v_add_f32 {v(r)}, {v(r)}, {v(r+1)}")
        a(f"v_add_f32 {v(r+2)}, {v(r+2)}, {v(r+3)}")
    for k in range(4):
        r = RS + 4 * k
        a(f"v_add_f32 {v(r)}, {v(r)}, {v(r+2)}")
    ss, dd = v(RS), v(RS + 8)
    a(f"v_add_f32 {ss}, {ss}, {v(RS+4)}")
    a(f"v_add_f32 {dd}, {dd}, {v(RS+12)}")
    pk = v(RS + 1)
    a(f"v_cvt_pk_bf16_f32 {pk}, {ss}, {dd}")
    unpack(pk, ss, dd)
    gg = v(RS + 2)
    a(f"v_mul_f32 {gg}, 0x{f2u(-LOG2E):x}, {dd}")
    a(f"v_exp_f32 {gg}, {gg}")
    a(f"v_add_f32 {gg}, 1.0, {gg}")
    a(f"v_rcp_f32 {gg}, {gg}")
    a(f"v_mul_f32 {gg}, {gg}, {dd}")
    a(f"v_cvt_pk_bf16_f32 {pk}, {gg}, {gg}")
    a(f"v_lshlrev_b32 {gg}, 16, {pk}")
    a(f"v_mul_f32 {ss}, {ss}, {gg}")
    a(f"v_cvt_pk_bf16_f32 {pk}, {ss}, {ss}")
    a(f"v_lshlrev_b32 {ss}, 16, {pk}")
    a(f"v_lshlrev_b32 {vXv}, 16, {vXv}")
    a(f"v_add_f32 {ss}, {ss}, {vXv}")
    a(f"v_cvt_pk_bf16_f32 {pk}, {ss}, {ss}")
    a("s_mov_b64 exec, 0xffff")
    a(f"buffer_store_short {pk}, {vXa}, {sOUT}, 0 offen")
    a.label("L_end", pad=False)
    a("s_endpgm")
    a.raw('.section .rodata,"a"')
    a.raw(".p2align 6")
    a.raw(f".amdhsa_kernel {NAME}_kernel")
    a.raw("  .amdhsa_next_free_vgpr 256")
    a.raw("  .amdhsa_next_free_sgpr 96")
    a.raw("  .amdhsa_accum_offset 256")
    a.raw("  .amdhsa_group_segment_fixed_size 0")
    a.raw("  .amdhsa_kernarg_size 96")
    a.raw("  .amdhsa_user_sgpr_count 2")
    a.raw("  .amdhsa_user_sgpr_kernarg_segment_ptr 1")
    a.raw("  .amdhsa_system_sgpr_workgroup_id_x 1")
    a.raw("  .amdhsa_float_denorm_mode_32 3")
    a.raw(".end_amdhsa_kernel")
    sys.stderr.write(f"instructions: {a.ninst}, nops: {a.nops}\n")
    return a.text()


if __name__ == "__main__":
    import argparse
    ap = argparse.ArgumentParser()
    ap.add_argument("-o", default=f"cdna_kernels/{NAME}.s")
    ap.add_argument("--R", type=int, default=32)
    ap.add_argument("--pattern", default="gwg4")
    ap.add_argument("--pol", default="nt")
    ap.add_argument("--wpol", default="")
    ap.add_argument("--wo_at", type=int, default=32)
    args = ap.parse_args()
    open(args.o, "w").write(gen(args.R, args.pattern, args.pol, args.wpol, args.wo_at))
```

```python
import re

TRANS = ("v_exp_f32", "v_log_f32", "v_rcp_f32", "v_rsq_f32", "v_sqrt_f32", "v_sin_f32", "v_cos_f32", "v_rcp_iflag_f32")

def parse_regs(tok):
    tok = tok.strip()
    tok = tok.lstrip('-')
    m = re.fullmatch(r"abs\((.*)\)", tok) or re.fullmatch(r"\|(.*)\|", tok)
    if m:
        tok = m.group(1)
    m = re.fullmatch(r"([vsa])\[(\d+):(\d+)\]", tok)
    if m:
        return [(m.group(1), i) for i in range(int(m.group(2)), int(m.group(3)) + 1)]
    m = re.fullmatch(r"([vsa])(\d+)", tok)
    if m:
        return [(m.group(1), int(m.group(2)))]
    if tok in ("vcc", "vcc_lo", "vcc_hi"):
        return [("vcc", 0)]
    if tok in ("exec", "exec_lo", "exec_hi"):
        return [("exec", 0)]
    if tok == "m0":
        return [("m0", 0)]
    return []


class Asm:
    def __init__(self):
        self.lines = []
        self.pos = 0
        self.lastw = {}
        self.mfma_c_read = {}
        self.store_data = {}
        self.vm = []
        self.nops = 0
        self.ninst = 0

    def raw(self, s):
        self.lines.append(s)

    def comment(self, s):
        self.lines.append("    ; " + s)

    def label(self, name, pad=True):
        if pad:
            self.nop(8)
        self.lines.append(name + ":")

    def begin_skip(self):
        self._skip_start = self.pos

    def end_skip(self, name):
        st = self._skip_start
        L = self.pos - st
        for k, (p, kind, op, dr) in list(self.lastw.items()):
            if p < st:
                self.lastw[k] = (p + L, kind, op, dr)
        for d in (self.mfma_c_read, self.store_data):
            for k, p in list(d.items()):
                if p < st:
                    d[k] = p + L
        self.lines.append(name + ":")

    def nop(self, n):
        while n > 0:
            k = min(n, 16)
            self.lines.append("    s_nop %d" % (k - 1))
            self.pos += k
            self.nops += 1
            n -= k

    def __call__(self, text, tag=None, optional=False):
        text = text.strip()
        op, _, rest = text.partition(" ")
        ops = []
        depth = 0
        cur = ""
        for ch in rest:
            if ch in "[(":
                depth += 1
            if ch in "])":
                depth -= 1
            if ch == "," and depth == 0:
                ops.append(cur)
                cur = ""
            else:
                cur += ch
        ops.append(cur)
        mods = ""
        if ops:
            last = ops[-1].strip()
            parts = last.split(None, 1)
            if parts:
                ops[-1] = parts[0]
                mods = parts[1] if len(parts) > 1 else ""
        ops = [o.strip() for o in ops if o.strip() != ""]
        is_valu = op.startswith("v_") and not op.startswith("v_mfma")
        is_mfma = op.startswith("v_mfma")
        is_vmem = op.startswith("buffer_") or op.startswith("global_")
        is_ds = op.startswith("ds_")
        is_salu = op.startswith("s_")
        is_dpp = op.endswith("_dpp") or "row_" in mods or "quad_perm" in mods
        is_perml = op.startswith("v_permlane")
        is_dot = op.startswith("v_dot")
        is_trans = any(op.startswith(t) for t in TRANS)
        writes, reads = [], []
        if is_valu:
            if op.startswith("v_cmp"):
                writes = parse_regs(ops[0])
                for o in ops[1:]:
                    reads += parse_regs(o)
            elif is_perml:
                writes = parse_regs(ops[0]) + parse_regs(ops[1])
                reads = list(writes)
            else:
                writes = parse_regs(ops[0])
                k = 1
                if "_co_" in op:
                    writes += parse_regs(ops[1])
                    k = 2
                for o in ops[k:]:
                    reads += parse_regs(o)
                if op.startswith("v_fmac") or op.startswith("v_dot2c") or is_dpp or op.startswith("v_writelane"):
                    reads += parse_regs(ops[0])
                if op.startswith("v_cndmask") and len(ops) == 3:
                    reads.append(("vcc", 0))
        elif is_mfma:
            writes = parse_regs(ops[0])
            reads = parse_regs(ops[1]) + parse_regs(ops[2]) + parse_regs(ops[3])
        elif is_vmem:
            if "load" in op:
                writes = parse_regs(ops[0])
                for o in ops[1:]:
                    reads += parse_regs(o)
            else:
                for o in ops:
                    reads += parse_regs(o)
                if "atomic" in op and "sc0" in mods:
                    writes = parse_regs(ops[0])
        elif is_ds:
            if "read" in op or "permute" in op or "swizzle" in op:
                writes = parse_regs(ops[0])
                for o in ops[1:]:
                    reads += parse_regs(o)
            else:
                for o in ops:
                    reads += parse_regs(o)
        elif is_salu:
            if op.startswith("s_cmp") or op.startswith("s_cbranch") or op in ("s_waitcnt", "s_barrier", "s_branch", "s_endpgm", "s_sleep", "s_setprio", "s_nop"):
                for o in ops:
                    reads += parse_regs(o)
            else:
                writes = parse_regs(ops[0]) if ops else []
                for o in ops[1:]:
                    reads += parse_regs(o)
        need = 0
        def req(p, ws):
            nonlocal need
            need = max(need, p + 1 + ws)
        for r in reads:
            lw = self.lastw.get(r)
            if lw is None:
                continue
            p, kind, wop, drange = lw
            if kind in ("valu", "trans", "dot"):
                if r[0] == "v":
                    if is_dpp or is_perml:
                        req(p, 2)
                    if is_mfma:
                        req(p, 2)
                    if op.startswith("v_readlane") or op.startswith("v_readfirstlane"):
                        req(p, 1)
                    if kind == "trans" and (is_valu or is_mfma) :
                        req(p, 1)
                    if kind == "dot":
                        same_c = (op == wop) and is_dot and (r in (parse_regs(ops[3]) if len(ops) > 3 else parse_regs(ops[0]))) and r not in parse_regs(ops[1]) + parse_regs(ops[2])
                        if not same_c:
                            req(p, 3)
                else:
                    if is_valu:
                        req(p, 4 if op.startswith("v_readlane") or op.startswith("v_writelane") else 2)
                    if is_vmem:
                        req(p, 5)
                    if is_salu:
                        req(p, 1)
            elif kind == "mfma":
                if is_mfma:
                    creg = parse_regs(ops[3])
                    if r in creg and creg == drange and r not in parse_regs(ops[1]) + parse_regs(ops[2]):
                        pass
                    elif r in creg and r not in parse_regs(ops[1]) + parse_regs(ops[2]):
                        req(p, 6)
                    else:
                        req(p, 8)
                else:
                    req(p, 8)
        for r in writes:
            lw = self.lastw.get(r)
            if lw is not None:
                p, kind, wop, drange = lw
                if kind == "mfma" and not is_mfma:
                    req(p, 8)
                if kind == "dot" and not (is_dot and op == wop):
                    req(p, 3)
            if is_valu:
                if r in self.mfma_c_read:
                    req(self.mfma_c_read[r], 3)
                if r in self.store_data:
                    req(self.store_data[r], 2)
            elif r in self.store_data:
                req(self.store_data[r], 1)
        if need > self.pos:
            self.nop(need - self.pos)
        self.lines.append("    " + text)
        self.ninst += 1
        kind = None
        if is_mfma:
            kind = "mfma"
        elif is_valu:
            kind = "dot" if is_dot else ("trans" if is_trans else "valu")
        elif is_salu:
            kind = "salu"
        else:
            kind = "mem"
        for r in writes:
            self.lastw[r] = (self.pos, kind, op, writes)
        if is_mfma:
            for r in parse_regs(ops[3]):
                self.mfma_c_read[r] = self.pos
        if is_vmem and ("store" in op) and ("x4" in op or "x3" in op):
            for r in parse_regs(ops[0] if op.startswith("buffer") else ops[1]):
                self.store_data[r] = self.pos
        if is_vmem:
            self.vm.append((tag if tag is not None else object(), optional))
        if op == "s_nop":
            self.pos += int(ops[0]) + 1
        else:
            self.pos += 1

    def wait_vm(self, tag, cond=False):
        tags = [t for t, _ in self.vm]
        if tag not in tags:
            return
        i = tags.index(tag)
        n = sum(1 for t, o in self.vm[i + 1:] if not o)
        assert n <= 63, n
        self("s_waitcnt vmcnt(%d)" % n)
        if cond:
            self.vm = [e for e in self.vm[:i + 1] if not e[1]] + self.vm[i + 1:]
        else:
            self.vm = self.vm[i + 1:]

    def wait_vm_all(self):
        self("s_waitcnt vmcnt(0)")
        self.vm = []

    def wait_lgkm(self, n=0):
        self("s_waitcnt lgkmcnt(%d)" % n)

    def text(self):
        return "\n".join(self.lines) + "\n"
```

```python
import sys, struct
from asmlib import Asm

NAME = "recurrent_scan__mha_block_cached__geglu_ffn__decode"
HEADER = open("cdna_kernels/%s.s.ref" % NAME).read().split("; Override launch")[0]

def f2u(x):
    return struct.unpack("<I", struct.pack("<f", x))[0]

LOG2E = 1.4426950408889634
OOB = 0x80000000
WS_Y, WS_ST, WS_FF, WS_SIZE = 0, 0x80000, 0x100000, 0x400000
LDSQ, LDSF, LDSML, LDSO, LDSY, LDSR = 0, 4096, 4608, 5120, 9216, 13312
LDS_BYTES = 16384
DPPM = "row_mask:0xf bank_mask:0xf"


def gen(R=12, K0=8, pattern="gwg1", pol="nt", wpol="", stamps=False, Kpre=2, hb0=1, hb1=1, lock="barrier", vgrp=16, rot=1, touch=1, gpol="", ffg=1, rotk=1):
    a = Asm()
    nst = [0]
    def stamp():
        if not stamps: return
        k = nst[0]; nst[0] += 1
        assert k < 8
        a(f"s_memrealtime s[{80+2*k}:{81+2*k}]")
        a("s_waitcnt lgkmcnt(0)")
    sX, sK, sV, sWQ, sWO, sGU, sWD, sOUT, sDBG, sWS = [f"s[{i}:{i+3}]" for i in range(4, 44, 4)]
    sXCD, sJ, sH, sB, sSP, sBH, sW = "s48", "s49", "s50", "s51", "s52", "s53", "s54"
    sKoff, sVoff, sWQoff, sWOoff, sWDoff, sSlice = "s55", "s56", "s57", "s58", "s59", "s60"
    sT0, sT1, sT2, sT3 = "s61", "s62", "s63", "s68"
    sOdd, sTwo, sBmask = "s[64:65]", "s[66:67]", "s[70:71]"
    sLOG2E, sSCALE, sHI, sP, sCnt, sFFv, sYrec = "s72", "s73", "s74", "s76", "s77", "s78", "s79"
    vTid, vLane, vOffK, vOffWq, vOffWo, vG, vC, vD0 = [f"v{i}" for i in range(8)]
    vSel = ["v8", "v9", "v10", "v11"]
    vQ = ["v12", "v13", "v14", "v15"]
    vS = ["v16", "v17", "v18", "v19"]
    ACC = 20
    vA = [24, 28]
    vBc = ["v32", "v33"]
    vYoff, vSToff, vFFoff, vCQ, vM, vL = "v34", "v35", "v36", "v37", "v38", "v39"
    P0 = 40
    T = 56
    WA = 128
    RING = 192
    assert R <= 16
    def v(i): return f"v{i}"
    def vr(i, n=4): return f"v[{i}:{i+n-1}]"

    a.raw(HEADER.rstrip("\n"))
    a.raw(f"; @launch grid=(256,1,1) block=(512,1,1) lds={LDS_BYTES}")
    a.raw('.amdgcn_target "amdgcn-amd-amdhsa--gfx950"')
    a.raw(".text")
    a.raw(f".globl {NAME}_kernel")
    a.raw(".p2align 8")
    a.raw(f".type {NAME}_kernel,@function")
    a.raw(f"{NAME}_kernel:")
    a("s_cmp_ge_u32 s2, 256")
    a("s_cbranch_scc1 L_exit")
    if stamps:
        for k in range(1, 8):
            a(f"s_mov_b32 s{80+2*k}, 0")
    stamp()
    a("s_load_dwordx2 s[4:5], s[0:1], 0")
    a("s_load_dwordx2 s[16:17], s[0:1], 24")
    a("s_load_dwordx2 s[8:9], s[0:1], 8")
    a("s_load_dwordx4 s[44:47], s[0:1], 48")
    a("s_load_dwordx2 s[28:29], s[0:1], 64")
    a("s_load_dwordx2 s[12:13], s[0:1], 16")
    a("s_load_dwordx2 s[20:21], s[0:1], 32")
    a("s_load_dwordx2 s[32:33], s[0:1], 72")
    a("s_load_dwordx2 s[36:37], s[0:1], 80")
    a("s_load_dwordx2 s[40:41], s[0:1], 88")
    sizes = {4: 2048, 8: 1 << 27, 12: 1 << 27, 16: 512 * 4096 * 2, 20: 4096 * 512 * 2, 24: 512 * 1376 * 2,
             28: 1376 * 512 * 2, 32: 2048, 36: 256, 40: WS_SIZE}
    a(f"v_lshrrev_b32 v{T}, 6, {vTid}")
    a(f"v_and_b32 {vLane}, 63, {vTid}")
    a(f"v_readfirstlane_b32 {sW}, v{T}")
    for base, sz in sizes.items():
        a(f"s_mov_b32 s{base+2}, 0x{sz:x}")
        a(f"s_mov_b32 s{base+3}, 0x00020000")
    a(f"s_and_b32 {sXCD}, s2, 7")
    a(f"s_lshr_b32 {sJ}, s2, 3")
    a(f"s_lshr_b32 {sT0}, {sJ}, 3")
    a(f"s_lshl_b32 {sH}, {sXCD}, 2")
    a(f"s_add_u32 {sH}, {sH}, {sT0}")
    a(f"s_bfe_u32 {sB}, {sJ}, 0x10002")
    a(f"s_and_b32 {sSP}, {sJ}, 3")
    a(f"s_lshl_b32 {sBH}, {sB}, 5")
    a(f"s_add_u32 {sBH}, {sBH}, {sH}")
    a(f"s_lshl_b32 {sP}, {sBH}, 2")
    a(f"s_add_u32 {sP}, {sP}, {sSP}")
    a(f"s_lshl_b32 {sSlice}, {sT0}, 3")
    a(f"s_add_u32 {sSlice}, {sSlice}, {sXCD}")
    a(f"s_lshl_b32 {sSlice}, {sSlice}, 3")
    a(f"s_and_b32 {sT1}, {sJ}, 7")
    a(f"s_add_u32 {sSlice}, {sSlice}, {sT1}")
    sRot = "s75"
    a(f"s_lshl_b32 {sRot}, {sT1}, 1")
    if not rot: a(f"s_mov_b32 {sRot}, 0")
    a(f"s_cmp_lt_u32 {sSlice}, 172")
    a(f"s_cselect_b32 {sFFv}, 0, 0x{OOB:x}")
    a(f"v_lshlrev_b32 {vOffK}, 4, {vLane}")
    a(f"v_lshrrev_b32 {vG}, 4, {vLane}")
    a(f"v_and_b32 {vC}, 15, {vLane}")
    a(f"v_lshlrev_b32 {vOffWq}, 13, {vG}")
    a(f"v_lshl_add_u32 {vOffWq}, {vC}, 4, {vOffWq}")
    if pattern == "gwg4":
        kstride = 32768
        a(f"s_lshl_b32 {sT1}, {sSP}, 3")
        a(f"s_add_u32 {sT1}, {sT1}, {sW}")
        a(f"s_lshl_b32 {sT1}, {sT1}, 10")
    elif pattern == "gwg1":
        kstride = 8192
        a(f"s_lshl_b32 {sT1}, {sSP}, 19")
        a(f"s_lshl_b32 {sT2}, {sW}, 10")
        a(f"s_add_u32 {sT1}, {sT1}, {sT2}")
    elif pattern == "wave":
        kstride = 1024
        a(f"s_lshl_b32 {sT1}, {sSP}, 19")
        a(f"s_lshl_b32 {sT2}, {sW}, 16")
        a(f"s_add_u32 {sT1}, {sT1}, {sT2}")
    a(f"s_lshl_b32 {sKoff}, {sBH}, 21")
    a(f"s_add_u32 {sKoff}, {sKoff}, {sT1}")
    vKV = v(T + 21)
    a(f"v_add_u32 {vKV}, {sKoff}, {vOffK}")
    kmask = kstride * 64 - 1
    rsrc = sBH if pattern == "gwg4" else sP
    if pattern == "wave":
        a(f"s_lshl_b32 {sKoff}, {sP}, 3")
        a(f"s_add_u32 {sKoff}, {sKoff}, {sW}")
        a(f"s_mul_i32 {sKoff}, {sKoff}, {rotk * kstride}")
    else:
        a(f"s_mul_i32 {sKoff}, {rsrc}, {rotk * kstride}")
    a(f"s_and_b32 {sKoff}, {sKoff}, 0x{kmask:x}")
    a(f"s_mov_b32 {sVoff}, {sKoff}")
    a(f"s_lshl_b32 {sWQoff}, {sW}, 19")
    a(f"s_lshl_b32 {sT1}, {sH}, 8")
    a(f"s_add_u32 {sWQoff}, {sWQoff}, {sT1}")
    a(f"s_and_b32 {sT2}, {sW}, 3")
    vGUoff, vXqoff, vXfoff = v(T + 70), v(T + 4), v(T + 5)
    a(f"s_mul_i32 {sT1}, {sT2}, {64*5504}")
    a(f"s_lshl_b32 {sT3}, {sSlice}, 4")
    a(f"s_add_u32 {sT1}, {sT1}, {sT3}")
    a(f"s_or_b32 {sT1}, {sT1}, {sFFv}")
    a(f"v_mul_u32_u24 {vGUoff}, 5504, {vLane}")
    a(f"v_add_u32 {vGUoff}, {sT1}, {vGUoff}")
    a(f"s_lshl_b32 {sT1}, {sB}, 10")
    a(f"s_lshl_b32 {sT3}, {sW}, 7")
    a(f"s_add_u32 {sT1}, {sT1}, {sT3}")
    vCrot = v(T + 71)
    a(f"v_add_u32 {vCrot}, {sRot}, {vC}")
    a(f"v_and_b32 {vCrot}, 15, {vCrot}")
    a(f"v_lshlrev_b32 {vXqoff}, 3, {vCrot}")
    a(f"v_lshl_add_u32 {vXqoff}, {vG}, 1, {vXqoff}")
    a(f"v_add_u32 {vXqoff}, {sT1}, {vXqoff}")
    a(f"s_lshl_b32 {sT1}, {sT2}, 8")
    a(f"v_lshlrev_b32 {vXfoff}, 2, {vLane}")
    a(f"v_add_u32 {vXfoff}, {sT1}, {vXfoff}")
    a("s_waitcnt lgkmcnt(0)")
    order = [("k", i) for i in range(64)] + [("v", i) for i in range(64)]
    free = list(range(R))
    slot_of = {}
    state = {"next": 0}
    def issue_next():
        if state["next"] >= len(order) or not free:
            return False
        el = order[state["next"]]
        state["next"] += 1
        s = free.pop(0)
        slot_of[el] = s
        dst = vr(RING + 4 * s)
        kind, i = el
        if kind == "k":
            a(f"buffer_load_dwordx4 {dst}, {vKV}, {sK}, {sKoff} offen {pol}".rstrip(), tag=el)
            if i < 63:
                a(f"s_add_u32 {sKoff}, {sKoff}, {kstride}")
                a(f"s_and_b32 {sKoff}, {sKoff}, 0x{kmask:x}")
        elif kind == "v":
            a(f"buffer_load_dwordx4 {dst}, {vKV}, {sV}, {sVoff} offen {pol}".rstrip(), tag=el)
            if i < 63:
                a(f"s_add_u32 {sVoff}, {sVoff}, {kstride}")
                a(f"s_and_b32 {sVoff}, {sVoff}, 0x{kmask:x}")
        return True
    def release(el):
        free.append(slot_of[el])
        issue_next()
    X0, X1 = T + 12, T + 16
    vXq, vXf0, vXf1 = v(T + 20), v(T + 68), v(T + 69)
    a(f"buffer_load_dwordx4 {vr(X0)}, {vOffK}, {sX}, 0 offen", tag="x0")
    a(f"buffer_load_dwordx4 {vr(X1)}, {vOffK}, {sX}, 0 offen offset:1024", tag="x1")
    a(f"buffer_load_ushort {vXq}, {vXqoff}, {sX}, 0 offen", tag="xq")
    a(f"buffer_load_dword {vXf0}, {vXfoff}, {sX}, 0 offen", tag="xf0")
    a(f"buffer_load_dword {vXf1}, {vXfoff}, {sX}, 0 offen offset:1024", tag="xf1")
    for _ in range(Kpre):
        issue_next()
    if hb0: a("s_barrier")
    a(f"s_lshl_b32 {sT3}, {sRot}, 15")
    for i in range(16):
        a(f"s_add_u32 {sT1}, {sWQoff}, {sT3}")
        a(f"buffer_load_dwordx4 {vr(WA+4*i)}, {vOffWq}, {sWQ}, {sT1} offen {wpol}".rstrip(), tag=("wq", i))
        if i < 15:
            a(f"s_add_u32 {sT3}, {sT3}, 32768")
            a(f"s_and_b32 {sT3}, {sT3}, 0x7ffff")
    if hb1: a("s_barrier")
    for _ in range(K0 - Kpre):
        issue_next()
    a(f"s_cmp_lt_u32 {sW}, 4")
    a("s_cselect_b32 s24, s44, s46")
    a("s_cselect_b32 s25, s45, s47")
    GA, GB = T + 24, T + 28
    if touch:
        vTo = v(T + 3)
        a(f"s_lshl_b32 {sT1}, {sRot if rot else sRot}, 0")
        a(f"s_and_b32 {sT1}, {sJ}, 7")
        a(f"s_lshl_b32 {sT1}, {sT1}, 2")
        a(f"s_add_u32 {sT1}, {sT1}, {sT2}")
        a(f"s_mul_i32 {sT1}, {sT1}, {16*2752}")
        a(f"s_lshr_b32 {sT3}, {sSlice}, 3")
        a(f"s_cmp_lt_u32 {sT3}, 22")
        a(f"s_cselect_b32 {sT0}, 0, 0x{OOB:x}")
        a(f"s_lshl_b32 {sT3}, {sT3}, 7")
        a(f"s_add_u32 {sT1}, {sT1}, {sT3}")
        a(f"s_or_b32 {sT1}, {sT1}, {sT0}")
        a(f"v_lshrrev_b32 {vTo}, 2, {vLane}")
        a(f"v_mul_u32_u24 {vTo}, 2752, {vTo}")
        a(f"v_and_b32 {v(T+2)}, 3, {vLane}")
        a(f"v_lshl_add_u32 {vTo}, {v(T+2)}, 5, {vTo}")
        a(f"v_add_u32 {vTo}, {sT1}, {vTo}")
        a(f"buffer_load_dword {v(T+23)}, {vTo}, {sGU}, 0 offen {gpol}".rstrip(), tag="touch")

    a(f"v_lshlrev_b32 {vOffWo}, 10, {vG}")
    a(f"v_lshl_add_u32 {vOffWo}, {vC}, 4, {vOffWo}")
    a(f"s_lshl_b32 {sWOoff}, {sH}, 17")
    a(f"s_lshr_b32 {sT1}, {sW}, 2")
    a(f"s_lshl_b32 {sT1}, {sT1}, 16")
    a(f"s_add_u32 {sWOoff}, {sWOoff}, {sT1}")
    a(f"s_lshl_b32 {sT1}, {sT2}, 8")
    a(f"s_add_u32 {sWOoff}, {sWOoff}, {sT1}")
    a(f"s_lshl_b32 {sWDoff}, {sSlice}, 13")
    a(f"s_lshl_b32 {sYrec}, {sP}, 11")
    a(f"s_lshl_b32 {sT3}, {sW}, 10")
    a(f"s_add_u32 {sT1}, {sYrec}, {sT3}")
    a(f"s_cmp_lt_u32 {sW}, 2")
    a(f"s_cselect_b32 {sT1}, {sT1}, 0x{OOB:x}")
    a(f"v_add_u32 {vYoff}, {sT1}, {vOffK}")
    a(f"s_lshl_b32 {sT1}, {sP}, 3")
    a(f"s_add_u32 {sT1}, {sT1}, 0x{WS_ST:x}")
    a(f"v_mov_b32 {vSToff}, {sT1}")
    a(f"v_mov_b32 v{T}, 0x{OOB:x}")
    a(f"v_cmp_eq_u32 vcc, 0, {vTid}")
    a(f"v_cndmask_b32 {vSToff}, v{T}, {vSToff}, vcc")
    a(f"s_lshl_b32 {sT1}, {sSlice}, 12")
    a(f"s_add_u32 {sT1}, {sT1}, 0x{WS_FF:x}")
    a(f"s_or_b32 {sT1}, {sT1}, {sFFv}")
    a(f"v_lshrrev_b32 v{T}, 1, {vG}")
    a(f"v_lshlrev_b32 v{T}, 11, v{T}")
    a(f"v_lshl_add_u32 v{T}, {vC}, 5, v{T}")
    a(f"v_and_b32 v{T+1}, 1, {vG}")
    a(f"v_lshl_add_u32 v{T}, v{T+1}, 4, v{T}")
    a(f"v_add_u32 {vFFoff}, {sT1}, v{T}")
    a(f"s_mov_b32 {sLOG2E}, 0x{f2u(LOG2E):x}")
    a(f"s_mov_b32 {sSCALE}, 0x{f2u(128 ** -0.5):x}")
    a(f"s_mov_b32 {sHI}, 0xffff0000")
    a(f"s_mov_b32 s64, 0xaaaaaaaa")
    a(f"s_mov_b32 s65, 0xaaaaaaaa")
    a(f"s_mov_b32 s66, 0xcccccccc")
    a(f"s_mov_b32 s67, 0xcccccccc")
    a(f"s_cmp_eq_u32 {sB}, 1")
    a(f"s_cselect_b64 {sBmask}, -1, 0")
    t0, t1, t2, t3 = v(T), v(T + 1), v(T + 6), v(T + 7)
    a(f"v_lshrrev_b32 {t0}, 3, {vC}")
    a(f"v_mul_u32_u24 {t0}, 0x0202, {t0}")
    a(f"v_add_u32 {t0}, 0x0100, {t0}")
    a(f"v_and_b32 {t1}, 1, {vC}")
    a(f"v_lshlrev_b32 {t1}, 4, {t1}")
    a(f"v_lshlrev_b32 {t0}, {t1}, {t0}")
    a(f"v_mov_b32 {t2}, 0x0c0c0000")
    a(f"v_lshrrev_b32 {t2}, {t1}, {t2}")
    a(f"v_or_b32 {t0}, {t0}, {t2}")
    a(f"v_bfe_u32 {t3}, {vC}, 1, 2")
    a(f"v_mov_b32 {t2}, 0x0c0c0c0c")
    for j in range(4):
        a(f"v_cmp_eq_u32 vcc, {j}, {t3}")
        a(f"v_cndmask_b32 {vSel[j]}, {t2}, {t0}, vcc")
    a(f"v_and_b32 {t0}, 1, {vG}")
    a(f"v_lshlrev_b32 {t0}, 2, {t0}")
    a(f"v_lshl_add_u32 {t0}, {vC}, 3, {t0}")
    a(f"v_lshrrev_b32 {t1}, 1, {vG}")
    a(f"v_add_u32 {vD0}, {t0}, {t1}")

    def allreduce(op, regs, tmps):
        for ctl in ("quad_perm:[1,0,3,2]", "quad_perm:[2,3,0,1]", "row_half_mirror", "row_mirror"):
            for r in regs:
                a(f"{op}_dpp {r}, {r}, {r} {ctl} {DPPM}")
        for sw in ("v_permlane16_swap_b32", "v_permlane32_swap_b32"):
            for r, t in zip(regs, tmps):
                a(f"v_mov_b32 {t}, {r}")
            for r, t in zip(regs, tmps):
                a(f"{sw} {r}, {t}")
            for r, t in zip(regs, tmps):
                a(f"{op} {r}, {r}, {t}")
    def unpack(src, lo, hi):
        a(f"v_lshlrev_b32 {lo}, 16, {src}")
        a(f"v_and_b32 {hi}, {sHI}, {src}")

    F = T + 40
    a.wait_vm("x1")
    stamp()
    for b, X in enumerate((X0, X1)):
        for j in range(4):
            unpack(v(X + j), v(F + 8 * b + 2 * j), v(F + 8 * b + 2 * j + 1))
    vSum = [v(T + 56), v(T + 57)]
    vTmp = [v(T + 58), v(T + 59)]
    for b in range(2):
        a(f"v_add_f32 {vSum[b]}, {v(F+8*b)}, {v(F+8*b+1)}")
        a(f"v_add_f32 {vTmp[b]}, {v(F+8*b+2)}, {v(F+8*b+3)}")
    for k in (4, 6):
        for b in range(2):
            a(f"v_add_f32 {vSum[b]}, {vSum[b]}, {v(F+8*b+k)}")
            a(f"v_add_f32 {vTmp[b]}, {vTmp[b]}, {v(F+8*b+k+1)}")
    for b in range(2):
        a(f"v_add_f32 {vSum[b]}, {vSum[b]}, {vTmp[b]}")
    allreduce("v_add_f32", vSum, vTmp)
    vMean = [v(T + 60), v(T + 61)]
    for b in range(2):
        a(f"v_mul_f32 {vMean[b]}, 0x{f2u(1/512):x}, {vSum[b]}")
    for b in range(2):
        for k in range(8):
            a(f"v_sub_f32 {v(F+8*b+k)}, {v(F+8*b+k)}, {vMean[b]}")
    for b in range(2):
        a(f"v_mul_f32 {vSum[b]}, {v(F+8*b)}, {v(F+8*b)}")
        a(f"v_mul_f32 {vTmp[b]}, {v(F+8*b+1)}, {v(F+8*b+1)}")
    for k in range(2, 8, 2):
        for b in range(2):
            a(f"v_fmac_f32 {vSum[b]}, {v(F+8*b+k)}, {v(F+8*b+k)}")
            a(f"v_fmac_f32 {vTmp[b]}, {v(F+8*b+k+1)}, {v(F+8*b+k+1)}")
    for b in range(2):
        a(f"v_add_f32 {vSum[b]}, {vSum[b]}, {vTmp[b]}")
    allreduce("v_add_f32", vSum, vTmp)
    for b in range(2):
        a(f"v_mul_f32 {vSum[b]}, 0x{f2u(1/512):x}, {vSum[b]}")
    pk = v(T + 62)
    vRd = [v(T + 63), v(T + 64)]
    a(f"v_cvt_pk_bf16_f32 {pk}, {vMean[0]}, {vMean[1]}")
    unpack(pk, vMean[0], vMean[1])
    a(f"v_cvt_pk_bf16_f32 {pk}, {vSum[0]}, {vSum[1]}")
    unpack(pk, vSum[0], vSum[1])
    for b in range(2):
        a(f"v_add_f32 {vSum[b]}, 0x{f2u(1e-5):x}, {vSum[b]}")
    a(f"v_cvt_pk_bf16_f32 {pk}, {vSum[0]}, {vSum[1]}")
    unpack(pk, vSum[0], vSum[1])
    for b in range(2):
        a(f"v_sqrt_f32 {vSum[b]}, {vSum[b]}")
    a(f"v_cvt_pk_bf16_f32 {pk}, {vSum[0]}, {vSum[1]}")
    unpack(pk, vSum[0], vSum[1])
    for b in range(2):
        a(f"v_rcp_f32 {vRd[b]}, {vSum[b]}")
    a.wait_vm("xf1")
    mq, rq = v(F), v(F + 1)
    a(f"v_cndmask_b32 {mq}, {vMean[0]}, {vMean[1]}, {sBmask}")
    a(f"v_cndmask_b32 {rq}, {vRd[0]}, {vRd[1]}, {sBmask}")
    a(f"v_lshlrev_b32 {vXq}, 16, {vXq}")
    a(f"v_sub_f32 {vXq}, {vXq}, {mq}")
    a(f"v_cvt_pk_bf16_f32 {vXq}, {vXq}, {vXq}")
    a(f"v_lshlrev_b32 {vXq}, 16, {vXq}")
    a(f"v_mul_f32 {vXq}, {vXq}, {rq}")
    a(f"v_cvt_pk_bf16_f32 {vCQ}, {vXq}, 0")

    def prepA(coef, n, buf):
        a(f"v_mov_b32_dpp {vBc[buf]}, {coef} row_newbcast:{n} {DPPM}")
        for j in range(4):
            a(f"v_perm_b32 v{vA[buf]+j}, {vBc[buf]}, {vBc[buf]}, {vSel[j]}")
    def diag_seq(items):
        prepA(items[0][0], items[0][1], 0)
        for idx, (coef, n, data, tag, done, acc, zc) in enumerate(items):
            buf = idx & 1
            if idx + 1 < len(items):
                prepA(items[idx + 1][0], items[idx + 1][1], buf ^ 1)
            if tag is not None:
                a.wait_vm(tag)
            d = data() if callable(data) else data
            c = "0" if zc else vr(acc)
            a(f"v_mfma_f32_16x16x32_bf16 {vr(acc)}, {vr(vA[buf])}, {vr(d)}, {c}")
            if done:
                done()

    diag_seq([(vCQ, i, WA + 4 * i, ("wq", i), None, ACC, i == 0) for i in range(16)])
    while issue_next():
        pass
    vLq = v(F)
    a(f"v_lshlrev_b32 {vLq}, 5, {vC}")
    a(f"v_lshl_add_u32 {vLq}, {vG}, 4, {vLq}")
    a(f"s_lshl_b32 {sT2}, {sW}, 9")
    a(f"v_add_u32 {vLq}, {sT2}, {vLq}")
    vXN = [vXf0, vXf1]
    for b in range(2):
        lo, hi = v(F + 2 + 2 * b), v(F + 3 + 2 * b)
        unpack(vXN[b], lo, hi)
        a(f"v_sub_f32 {lo}, {lo}, {vMean[b]}")
        a(f"v_sub_f32 {hi}, {hi}, {vMean[b]}")
        a(f"v_cvt_pk_bf16_f32 {vXN[b]}, {lo}, {hi}")
        unpack(vXN[b], lo, hi)
        a(f"v_mul_f32 {lo}, {lo}, {vRd[b]}")
        a(f"v_mul_f32 {hi}, {hi}, {vRd[b]}")
        a(f"v_cvt_pk_bf16_f32 {vXN[b]}, {lo}, {hi}")
    a("s_mov_b32 exec_hi, 0")
    a(f"ds_write_b128 {vLq}, {vr(ACC)} offset:{LDSQ}")
    a("s_mov_b32 exec_hi, -1")
    a("s_waitcnt lgkmcnt(0)")
    a("s_barrier")
    stamp()
    QS = T + 44
    vLq2 = v(F)
    a(f"v_lshlrev_b32 {vLq2}, 5, {vC}")
    a(f"ds_read_b128 {vr(QS)}, {vLq2} offset:{LDSQ}")
    a(f"ds_read_b128 {vr(QS+4)}, {vLq2} offset:{LDSQ+16}")
    bufs = [QS + 8, QS + 16, P0, P0 + 8]
    w = 1
    while w < 8:
        batch = list(range(w, min(8, w + 4)))
        for k, ww in enumerate(batch):
            a(f"ds_read_b128 {vr(bufs[k])}, {vLq2} offset:{LDSQ+ww*512}")
            a(f"ds_read_b128 {vr(bufs[k]+4)}, {vLq2} offset:{LDSQ+ww*512+16}")
        a("s_waitcnt lgkmcnt(0)")
        for k, ww in enumerate(batch):
            for e in range(8):
                a(f"v_add_f32 {v(QS+e)}, {v(QS+e)}, {v(bufs[k]+e)}")
        w += 4
    for j in range(4):
        a(f"v_cvt_pk_bf16_f32 {vQ[j]}, {v(QS+2*j)}, {v(QS+2*j+1)}")
    a(f"s_cmp_lg_u32 {sW}, 0")
    a("s_cbranch_scc1 L_skip0"); a.begin_skip()
    SEN = T + 8
    for i in range(4):
        a(f"v_mov_b32 v{SEN+i}, -1")
    vWDoff = v(T + 2)
    a(f"v_add_u32 {vWDoff}, {sFFv}, {vOffWo}")
    a(f"buffer_store_dwordx4 {vr(SEN)}, {vYoff}, {sWS}, 0 offen sc1", tag="clr0", optional=True)
    a(f"buffer_store_dwordx4 {vr(SEN)}, {vYoff}, {sWS}, 0 offen offset:1024 sc1", tag="clr1", optional=True)
    a(f"buffer_store_dwordx2 {vr(SEN,2)}, {vSToff}, {sWS}, 0 offen sc1", tag="clr2", optional=True)
    for i in range(2):
        for cb in range(4):
            a(f"buffer_load_dwordx4 {vr(WA+4*(cb*2+i))}, {vWDoff}, {sWD}, {sWDoff} offen offset:{cb*256} nt", tag=("wd", cb * 2 + i), optional=True)
        if i == 0: a(f"s_add_u32 {sWDoff}, {sWDoff}, 4096")
    a.end_skip("L_skip0")

    def ffn_loads():
        a(f"buffer_load_dwordx4 {vr(GA)}, {vGUoff}, {sGU}, 0 offen {gpol}".rstrip(), tag="ga")
        a(f"buffer_load_dwordx4 {vr(GB)}, {vGUoff}, {sGU}, 0 offen offset:2752 {gpol}".rstrip(), tag="gb")
    def ffn1():
        FR = T + 48
        F = T + 32
        a.wait_vm("gb")
        a(f"s_mov_b32 {sT0}, 0x05040100")
        a(f"s_mov_b32 {sT1}, 0x07060302")
        for j in range(4):
            a(f"v_perm_b32 {v(F+8+2*j)}, {v(GB+j)}, {v(GA+j)}, {sT0}")
            a(f"v_perm_b32 {v(F+9+2*j)}, {v(GB+j)}, {v(GA+j)}, {sT1}")
        for b in range(2):
            for e in range(8):
                a(f"v_dot2_f32_bf16 {v(FR+8*b+e)}, {v(F+8+e)}, {vXN[b]}, 0")
        for i in range(8):
            a(f"v_permlane32_swap_b32 {v(FR+i)}, {v(FR+i+8)}")
        for i in range(8):
            a(f"v_add_f32 {v(FR+i)}, {v(FR+i)}, {v(FR+i+8)}")
        for i in range(4):
            a(f"v_permlane16_swap_b32 {v(FR+i)}, {v(FR+i+4)}")
        for i in range(4):
            a(f"v_add_f32 {v(FR+i)}, {v(FR+i)}, {v(FR+i+4)}")
        for i in range(2):
            a(f"v_add_f32_dpp {v(FR+i)}, {v(FR+i)}, {v(FR+i)} row_ror:8 row_mask:0xf bank_mask:0x3")
        for i in range(2):
            a(f"v_add_f32_dpp {v(FR+i)}, {v(FR+i+2)}, {v(FR+i+2)} row_ror:8 row_mask:0xf bank_mask:0xc")
        a(f"v_add_f32_dpp {v(FR)}, {v(FR)}, {v(FR)} row_half_mirror row_mask:0xf bank_mask:0x5")
        a(f"v_add_f32_dpp {v(FR)}, {v(FR+1)}, {v(FR+1)} row_half_mirror row_mask:0xf bank_mask:0xa")
        a(f"v_add_f32_dpp {v(FR)}, {v(FR)}, {v(FR)} quad_perm:[1,0,3,2] {DPPM}")
        a(f"v_add_f32_dpp {v(FR)}, {v(FR)}, {v(FR)} quad_perm:[2,3,0,1] {DPPM}")
        vLf = v(F + 1)
        a(f"v_lshrrev_b32 {vLf}, 2, {vLane}")
        a(f"v_lshlrev_b32 {vLf}, 5, {vLf}")
        a(f"s_lshl_b32 {sT2}, {sW}, 2")
        a(f"v_add_u32 {vLf}, {sT2}, {vLf}")
        a(f"ds_write_b32 {vLf}, {v(FR)} offset:{LDSF}")

    def ffn2():
        a(f"s_cmp_lg_u32 {sW}, 0")
        a("s_cbranch_scc1 L_skip1"); a.begin_skip()
        vLh = v(T)
        a(f"v_and_b32 {vLh}, 1, {vC}")
        a(f"v_lshl_add_u32 {vLh}, {vLh}, 2, {vG}")
        a(f"v_lshlrev_b32 {vLh}, 5, {vLh}")
        HB = T + 4
        for b in range(2):
            a(f"ds_read_b128 {vr(HB+8*b)}, {vLh} offset:{LDSF+b*256}")
            a(f"ds_read_b128 {vr(HB+8*b+4)}, {vLh} offset:{LDSF+b*256+16}")
        a("s_waitcnt lgkmcnt(0)")
        for q4 in range(4):
            r = HB + 4 * q4
            a(f"v_add_f32 {v(r)}, {v(r)}, {v(r+1)}")
            a(f"v_add_f32 {v(r+2)}, {v(r+2)}, {v(r+3)}")
        for q4 in range(4):
            r = HB + 4 * q4
            a(f"v_add_f32 {v(r)}, {v(r)}, {v(r+2)}")
        ga = [v(HB + 1), v(HB + 2)]
        gu = [v(HB + 5), v(HB + 6)]
        a(f"v_cvt_pk_bf16_f32 {v(HB+3)}, {v(HB)}, {v(HB+8)}")
        a(f"v_cvt_pk_bf16_f32 {v(HB+7)}, {v(HB+4)}, {v(HB+12)}")
        unpack(v(HB + 3), ga[0], ga[1])
        unpack(v(HB + 7), gu[0], gu[1])
        gz = [v(HB + 9), v(HB + 10)]
        K1 = 0.044715
        KK = -2.0 * 0.7978845608028654 * LOG2E
        for b in range(2):
            a(f"v_mul_f32 {gz[b]}, {ga[b]}, {ga[b]}")
        for b in range(2):
            a(f"v_mul_f32 {gz[b]}, {gz[b]}, {ga[b]}")
        a(f"s_mov_b32 {sT0}, 0x{f2u(K1):x}")
        for b in range(2):
            a(f"v_fma_f32 {gz[b]}, {gz[b]}, {sT0}, {ga[b]}")
        for b in range(2):
            a(f"v_mul_f32 {gz[b]}, 0x{f2u(KK):x}, {gz[b]}")
        for b in range(2):
            a(f"v_exp_f32 {gz[b]}, {gz[b]}")
        for b in range(2):
            a(f"v_add_f32 {gz[b]}, 1.0, {gz[b]}")
        for b in range(2):
            a(f"v_rcp_f32 {gz[b]}, {gz[b]}")
        for b in range(2):
            a(f"v_mul_f32 {gz[b]}, {gz[b]}, {ga[b]}")
        a(f"v_cvt_pk_bf16_f32 {v(HB+3)}, {gz[0]}, {gz[1]}")
        unpack(v(HB + 3), gz[0], gz[1])
        for b in range(2):
            a(f"v_mul_f32 {gz[b]}, {gz[b]}, {gu[b]}")
        vCH = v(HB + 11)
        a(f"v_cvt_pk_bf16_f32 {vCH}, {gz[0]}, {gz[1]}")
        FACC = T + 24
        prepA(vCH, 0, 0)
        prepA(vCH, 1, 1)
        a.wait_vm(("wd", 7), cond=True)
        for cb in range(4):
            a(f"v_mfma_f32_16x16x32_bf16 {vr(FACC+4*cb)}, {vr(vA[0])}, {vr(WA+4*(cb*2))}, 0")
        for cb in range(4):
            a(f"v_mfma_f32_16x16x32_bf16 {vr(FACC+4*cb)}, {vr(vA[1])}, {vr(WA+4*(cb*2+1))}, {vr(FACC+4*cb)}")
        for cb in range(4):
            a(f"buffer_store_dwordx4 {vr(FACC+4*cb)}, {vFFoff}, {sWS}, 0 offen offset:{cb*512} sc1", tag=("ffs", cb), optional=True)
        a.end_skip("L_skip1")

    def arrive():
        tags = [t for t, _ in a.vm]
        assert ("ffs", 3) not in tags and "clr2" not in tags
        a(f"s_cmp_lg_u32 {sW}, 0")
        a("s_cbranch_scc1 L_skip2"); a.begin_skip()
        a(f"v_mov_b32 {v(T)}, 1")
        a(f"v_mov_b32 {v(T+1)}, 0")
        a("s_mov_b64 exec, 1")
        a(f"buffer_atomic_add {v(T)}, {v(T+1)}, {sDBG}, 0 offen sc1", optional=True)
        a("s_mov_b64 exec, -1")
        a.end_skip("L_skip2")

    stamp()
    def sync(idx):
        if lock == "barrier":
            a("s_barrier")
    if lock == "prio": a("s_setprio 3")
    for G in range(4):
        if G == ffg:
            ffn_loads()
        if G == ffg + 2:
            ffn2()
        for i in range(16):
            el = ("k", G * 16 + i)
            a.wait_vm(el)
            d = RING + 4 * slot_of[el]
            a(f"v_dot2_f32_bf16 {v(P0+i)}, {v(d)}, {vQ[0]}, 0")
            for j in range(1, 4):
                a(f"v_dot2_f32_bf16 {v(P0+i)}, {v(d+j)}, {vQ[j]}, {v(P0+i)}")
            release(el)
            if G == 3:
                if i == 0: a(f"s_lshl_b32 s69, {sRot}, 12")
                a(f"s_add_u32 {sT1}, {sWOoff}, s69")
                a(f"buffer_load_dwordx4 {vr(WA+4*i)}, {vOffWo}, {sWO}, {sT1} offen {wpol}".rstrip(), tag=("wo", i))
                if i < 15:
                    a(f"s_add_u32 s69, s69, 4096")
                    a(f"s_and_b32 s69, s69, 0xffff")
        for j in range(8):
            a(f"v_add_f32_dpp {v(P0+j)}, {v(P0+j)}, {v(P0+j)} row_ror:8 row_mask:0xf bank_mask:0x3")
        for j in range(8):
            a(f"v_add_f32_dpp {v(P0+j)}, {v(P0+j+8)}, {v(P0+j+8)} row_ror:8 row_mask:0xf bank_mask:0xc")
        for j in range(4):
            a(f"v_add_f32_dpp {v(P0+j)}, {v(P0+j)}, {v(P0+j)} row_half_mirror row_mask:0xf bank_mask:0x5")
        for j in range(4):
            a(f"v_add_f32_dpp {v(P0+j)}, {v(P0+j+4)}, {v(P0+j+4)} row_half_mirror row_mask:0xf bank_mask:0xa")
        for j in range(4):
            a(f"v_add_f32_dpp {v(P0+j)}, {v(P0+j)}, {v(P0+j)} quad_perm:[1,0,3,2] {DPPM}")
        a(f"v_cndmask_b32 {v(P0)}, {v(P0)}, {v(P0+1)}, {sOdd}")
        a(f"v_cndmask_b32 {v(P0+2)}, {v(P0+2)}, {v(P0+3)}, {sOdd}")
        a(f"v_add_f32_dpp {v(P0)}, {v(P0)}, {v(P0)} quad_perm:[2,3,0,1] {DPPM}")
        a(f"v_add_f32_dpp {v(P0+2)}, {v(P0+2)}, {v(P0+2)} quad_perm:[2,3,0,1] {DPPM}")
        a(f"v_cndmask_b32 {vS[G]}, {v(P0)}, {v(P0+2)}, {sTwo}")
        if G == ffg + 1:
            ffn1()
            a("s_waitcnt lgkmcnt(0)")
            a("s_barrier")
        elif G < 3:
            sync(G)
    stamp()
    r01, r23 = v(T), v(T + 1)
    a(f"v_cvt_pk_bf16_f32 {r01}, {vS[0]}, {vS[1]}")
    a(f"v_cvt_pk_bf16_f32 {r23}, {vS[2]}, {vS[3]}")
    unpack(r01, vS[0], vS[1])
    unpack(r23, vS[2], vS[3])
    for G in range(4):
        a(f"v_mul_f32 {vS[G]}, {sSCALE}, {vS[G]}")
    a(f"v_cvt_pk_bf16_f32 {r01}, {vS[0]}, {vS[1]}")
    a(f"v_cvt_pk_bf16_f32 {r23}, {vS[2]}, {vS[3]}")
    unpack(r01, vS[0], vS[1])
    unpack(r23, vS[2], vS[3])
    a(f"v_max_f32 {vM}, {vS[0]}, {vS[1]}")
    a(f"v_max3_f32 {vM}, {vS[2]}, {vS[3]}, {vM}")
    allreduce("v_max_f32", [vM], [r01])
    for G in range(4):
        a(f"v_sub_f32 {vS[G]}, {vS[G]}, {vM}")
    for G in range(4):
        a(f"v_mul_f32 {vS[G]}, {sLOG2E}, {vS[G]}")
    for G in range(4):
        a(f"v_exp_f32 {vS[G]}, {vS[G]}")
    a(f"v_add_f32 {vL}, {vS[0]}, {vS[1]}")
    a(f"v_add_f32 {r23}, {vS[2]}, {vS[3]}")
    a(f"v_add_f32 {vL}, {vL}, {r23}")
    def pack_hilo(x, t):
        a(f"v_cvt_pk_bf16_f32 {t}, {x}, {x}")
        a(f"v_lshlrev_b32 {t}, 16, {t}")
        a(f"v_sub_f32 {t}, {x}, {t}")
        a(f"v_cvt_pk_bf16_f32 {x}, {x}, {t}")
    for G in range(4):
        pack_hilo(vS[G], v(T + 2 + G))
    allreduce("v_add_f32", [vL], [r01])
    vLml = v(T + 6)
    a(f"s_lshl_b32 {sT0}, {sW}, 3")
    a(f"v_mov_b32 {vLml}, {sT0}")
    a(f"ds_write_b64 {vLml}, v[38:39] offset:{LDSML}")
    vLo, vRo, vRml, vRy = v(T + 16), v(T + 17), v(T + 18), v(T + 19)
    a(f"s_lshl_b32 {sT0}, {sW}, 9")
    a(f"v_lshlrev_b32 {vLo}, 2, {vD0}")
    a(f"v_add_u32 {vLo}, {sT0}, {vLo}")
    a(f"s_lshr_b32 {sT1}, {sW}, 2")
    a(f"s_lshl_b32 {sT1}, {sT1}, 8")
    a(f"v_lshlrev_b32 {vRo}, 4, {vCrot}")
    a(f"v_lshl_add_u32 {vRo}, {vG}, 2, {vRo}")
    a(f"v_add_u32 {vRo}, {sT1}, {vRo}")
    a(f"v_and_b32 {vRml}, 7, {vLane}")
    a(f"v_lshlrev_b32 {vRml}, 3, {vRml}")
    a(f"v_and_b32 {vRy}, 127, {vTid}")
    a(f"v_lshlrev_b32 {vRy}, 4, {vRy}")
    items = []
    for i in range(64):
        el = ("v", i)
        def done(el=el, i=i):
            release(el)
            if lock == "barrier" and (i + 1) % vgrp == 0 and i < 63:
                a("s_barrier")
            if i == 31:
                arrive()
            if lock == "prio":
                if i == 39: a("s_setprio 1")
                if i == 55: a("s_setprio 0")
        items.append((vS[i // 16], i % 16, (lambda el=el: RING + 4 * slot_of[el]), el, done, ACC, i == 0))
    if lock == "barrier": a("s_barrier")
    if lock == "prio": a("s_setprio 2")
    diag_seq(items)
    stamp()
    def hilo_sum(acc):
        a(f"v_permlane32_swap_b32 {v(acc)}, {v(acc+1)}")
        a(f"v_permlane32_swap_b32 {v(acc+2)}, {v(acc+3)}")
        a(f"v_add_f32 {v(acc)}, {v(acc)}, {v(acc+1)}")
        a(f"v_add_f32 {v(acc+2)}, {v(acc+2)}, {v(acc+3)}")
    hilo_sum(ACC)
    a(f"ds_write_b32 {vLo}, {v(ACC)} offset:{LDSO}")
    a(f"ds_write_b32 {vLo}, {v(ACC+2)} offset:{LDSO+8}")
    a("s_waitcnt lgkmcnt(0)")
    a("s_barrier")
    ML = T + 4
    OW = T + 8
    a(f"ds_read_b64 {vr(ML,2)}, {vRml} offset:{LDSML}")
    for w in range(8):
        a(f"ds_read_b32 {v(OW+w)}, {vRo} offset:{LDSO+w*512}")
    a("s_waitcnt lgkmcnt(8)")
    a(f"v_max_f32_dpp {vM}, {v(ML)}, {v(ML)} quad_perm:[1,0,3,2] {DPPM}")
    a(f"v_max_f32_dpp {vM}, {vM}, {vM} quad_perm:[2,3,0,1] {DPPM}")
    a(f"v_max_f32_dpp {vM}, {vM}, {vM} row_half_mirror {DPPM}")
    sc = v(T + 6)
    a(f"v_sub_f32 {sc}, {v(ML)}, {vM}")
    a(f"v_mul_f32 {sc}, {sLOG2E}, {sc}")
    a(f"v_exp_f32 {sc}, {sc}")
    vO = v(T + 7)
    a(f"v_mov_b32 {vO}, 0")
    a(f"v_mul_f32 {vL}, {sc}, {v(ML+1)}")
    a("s_waitcnt lgkmcnt(0)")
    for w in range(8):
        a(f"v_fmac_f32_dpp {vO}, {sc}, {v(OW+w)} row_newbcast:{w} {DPPM}")
    pack_hilo(vO, v(T + 3))
    a(f"v_add_f32_dpp {vL}, {vL}, {vL} quad_perm:[1,0,3,2] {DPPM}")
    a(f"v_add_f32_dpp {vL}, {vL}, {vL} quad_perm:[2,3,0,1] {DPPM}")
    a(f"v_add_f32_dpp {vL}, {vL}, {vL} row_half_mirror {DPPM}")
    a(f"v_min_u32 {vM}, -2, {vM}")
    a(f"v_min_u32 {vL}, -2, {vL}")
    a(f"buffer_store_dwordx2 v[38:39], {vSToff}, {sWS}, 0 offen sc1")
    diag_seq([(vO, i, WA + 4 * i, ("wo", i), None, ACC, i == 0) for i in range(16)])
    hilo_sum(ACC)
    a(f"ds_write_b32 {vLo}, {v(ACC)} offset:{LDSY}")
    a(f"ds_write_b32 {vLo}, {v(ACC+2)} offset:{LDSY+8}")
    a("s_waitcnt lgkmcnt(0)")
    a("s_barrier")
    Y0, Y1 = T + 4, T + 8
    a(f"ds_read_b128 {vr(Y0)}, {vRy} offset:{LDSY}")
    a(f"ds_read_b128 {vr(Y1)}, {vRy} offset:{LDSY+2048}")
    a("s_waitcnt lgkmcnt(0)")
    for j in range(4):
        a(f"v_add_f32 {v(Y0+j)}, {v(Y0+j)}, {v(Y1+j)}")
    for j in range(4):
        a(f"v_min_u32 {v(Y0+j)}, -2, {v(Y0+j)}")
    a(f"buffer_store_dwordx4 {vr(Y0)}, {vYoff}, {sWS}, 0 offen sc1")
    stamp()
    a(f"s_cmp_lt_u32 {sJ}, 24")
    a("s_cbranch_scc1 L_end")
    sKk, sBk, sCol = sT0, sT1, sT2
    a(f"s_sub_u32 {sKk}, {sJ}, 24")
    a(f"s_lshl_b32 {sKk}, {sKk}, 3")
    a(f"s_add_u32 {sKk}, {sKk}, {sXCD}")
    a(f"s_lshr_b32 {sBk}, {sKk}, 5")
    a(f"s_and_b32 {sCol}, {sKk}, 31")
    a(f"s_lshl_b32 {sCol}, {sCol}, 4")
    vPl, vQ4 = v(T + 12), v(T + 13)
    vYa, vSa, vFa, vFb, vXa, vZero = v(T + 14), v(T + 15), v(T + 16), v(T + 17), v(T + 18), v(T + 19)
    vCv = v(T + 21)
    a(f"v_mov_b32 {vZero}, 0")
    a(f"v_lshrrev_b32 {vPl}, 2, {vTid}")
    a(f"v_and_b32 {vQ4}, 3, {vTid}")
    a(f"s_lshl_b32 {sT3}, {sBk}, 18")
    a(f"s_lshl_b32 {sCnt}, {sCol}, 2")
    a(f"s_add_u32 {sT3}, {sT3}, {sCnt}")
    a(f"v_lshlrev_b32 {vYa}, 11, {vPl}")
    a(f"v_lshl_add_u32 {vYa}, {vQ4}, 4, {vYa}")
    a(f"v_add_u32 {vYa}, {sT3}, {vYa}")
    a(f"s_lshl_b32 {sT3}, {sBk}, 10")
    a(f"s_add_u32 {sT3}, {sT3}, 0x{WS_ST:x}")
    a(f"v_lshlrev_b32 {vSa}, 3, {vPl}")
    a(f"v_add_u32 {vSa}, {sT3}, {vSa}")
    a(f"s_lshl_b32 {sT3}, {sBk}, 11")
    a(f"s_add_u32 {sT3}, {sT3}, {sCnt}")
    a(f"s_add_u32 {sT3}, {sT3}, 0x{WS_FF:x}")
    a(f"v_lshlrev_b32 {vFa}, 12, {vPl}")
    a(f"v_lshl_add_u32 {vFa}, {vQ4}, 4, {vFa}")
    a(f"v_add_u32 {vFa}, {sT3}, {vFa}")
    a(f"v_add_u32 {vFb}, 0x{128*4096:x}, {vFa}")
    a(f"v_mov_b32 {vCv}, 0x{OOB:x}")
    a(f"v_cmp_gt_u32 vcc, 44, {vPl}")
    a(f"v_cndmask_b32 {vFb}, {vCv}, {vFb}, vcc")
    a(f"s_lshl_b32 {sT3}, {sBk}, 10")
    a(f"s_lshl_b32 {sCnt}, {sCol}, 1")
    a(f"s_add_u32 {sT3}, {sT3}, {sCnt}")
    a(f"v_lshlrev_b32 {vXa}, 1, {vC}")
    a(f"v_add_u32 {vXa}, {sT3}, {vXa}")
    vXv = v(T + 20)
    a(f"buffer_load_ushort {vXv}, {vXa}, {sX}, 0 offen")
    a(f"s_mov_b32 {sCnt}, 0")
    a.label("L_cnt")
    a(f"buffer_load_dword {vCv}, {vZero}, {sDBG}, 0 offen sc1")
    a(f"s_add_u32 {sCnt}, {sCnt}, 1")
    a.wait_vm_all()
    a(f"v_readfirstlane_b32 {sT3}, {vCv}")
    a(f"s_cmp_gt_u32 {sCnt}, 400000")
    a("s_cbranch_scc1 L_cnt_done")
    a(f"s_cmp_lt_u32 {sT3}, 256")
    a("s_cbranch_scc1 L_cnt")
    a.label("L_cnt_done")
    FA, FB = T + 24, T + 28
    vChk = v(T + 22)
    a(f"buffer_load_dwordx4 {vr(FA)}, {vFa}, {sWS}, 0 offen sc1")
    a(f"buffer_load_dwordx4 {vr(FB)}, {vFb}, {sWS}, 0 offen sc1")
    a.wait_vm_all()
    def reduce4(Y):
        a(f"v_permlane32_swap_b32 {v(Y)}, {v(Y+2)}")
        a(f"v_permlane32_swap_b32 {v(Y+1)}, {v(Y+3)}")
        a(f"v_add_f32 {v(Y)}, {v(Y)}, {v(Y+2)}")
        a(f"v_add_f32 {v(Y+1)}, {v(Y+1)}, {v(Y+3)}")
        a(f"v_permlane16_swap_b32 {v(Y)}, {v(Y+1)}")
        a(f"v_add_f32 {v(Y)}, {v(Y)}, {v(Y+1)}")
        a(f"v_add_f32_dpp {v(Y)}, {v(Y)}, {v(Y)} row_ror:4 {DPPM}")
        a(f"v_add_f32_dpp {v(Y)}, {v(Y)}, {v(Y)} row_ror:8 {DPPM}")
    for j in range(4):
        a(f"v_add_f32 {v(FA+j)}, {v(FA+j)}, {v(FB+j)}")
    reduce4(FA)
    vLr = v(T + 23)
    a(f"v_lshl_add_u32 {vLr}, {vQ4}, 2, {vG}")
    a(f"v_lshlrev_b32 {vLr}, 5, {vLr}")
    a(f"s_lshl_b32 {sT3}, {sW}, 2")
    a(f"v_add_u32 {vLr}, {sT3}, {vLr}")
    a(f"ds_write_b32 {vLr}, {v(FA)} offset:{LDSR+512}")
    YA, SA = T + 32, T + 36
    a.label("L_y")
    a(f"buffer_load_dwordx4 {vr(YA)}, {vYa}, {sWS}, 0 offen sc1")
    a(f"buffer_load_dwordx2 {vr(SA,2)}, {vSa}, {sWS}, 0 offen sc1")
    a(f"s_add_u32 {sCnt}, {sCnt}, 1")
    a.wait_vm_all()
    a(f"v_max3_u32 {vChk}, {v(YA)}, {v(YA+1)}, {v(YA+2)}")
    a(f"v_max3_u32 {vChk}, {vChk}, {v(YA+3)}, {v(SA)}")
    a(f"v_max_u32 {vChk}, {vChk}, {v(SA+1)}")
    a(f"v_cmp_eq_u32 vcc, -1, {vChk}")
    a(f"s_cmp_gt_u32 {sCnt}, 400000")
    a("s_cbranch_scc1 L_y_done")
    a("s_cmp_lg_u64 vcc, 0")
    a("s_cbranch_scc1 L_y")
    a.label("L_y_done")
    mh, ee, zz = v(T + 38), v(T + 39), v(T + 40)
    a(f"v_max_f32_dpp {mh}, {v(SA)}, {v(SA)} row_ror:4 {DPPM}")
    a(f"v_max_f32_dpp {mh}, {mh}, {mh} row_ror:8 {DPPM}")
    a(f"v_sub_f32 {ee}, {v(SA)}, {mh}")
    a(f"v_mul_f32 {ee}, {sLOG2E}, {ee}")
    a(f"v_exp_f32 {ee}, {ee}")
    a(f"v_mul_f32 {zz}, {ee}, {v(SA+1)}")
    a(f"v_add_f32_dpp {zz}, {zz}, {zz} row_ror:4 {DPPM}")
    a(f"v_add_f32_dpp {zz}, {zz}, {zz} row_ror:8 {DPPM}")
    a(f"v_rcp_f32 {zz}, {zz}")
    a(f"v_mul_f32 {ee}, {ee}, {zz}")
    for j in range(4):
        a(f"v_mul_f32 {v(YA+j)}, {v(YA+j)}, {ee}")
    reduce4(YA)
    a(f"ds_write_b32 {vLr}, {v(YA)} offset:{LDSR}")
    a("s_waitcnt lgkmcnt(0)")
    a("s_barrier")
    stamp()
    a(f"s_cmp_lg_u32 {sW}, 0")
    a("s_cbranch_scc1 L_end")
    vRr = v(T + 23)
    a(f"v_lshlrev_b32 {vRr}, 5, {vC}")
    RS = T + 24
    for k in range(4):
        off = LDSR + (k >> 1) * 512 + (k & 1) * 16
        a(f"ds_read_b128 {vr(RS+4*k)}, {vRr} offset:{off}")
    a("s_waitcnt lgkmcnt(0)")
    for k in range(4):
        r = RS + 4 * k
        a(f"v_add_f32 {v(r)}, {v(r)}, {v(r+1)}")
        a(f"v_add_f32 {v(r+2)}, {v(r+2)}, {v(r+3)}")
    for k in range(4):
        r = RS + 4 * k
        a(f"v_add_f32 {v(r)}, {v(r)}, {v(r+2)}")
    ss, dd = v(RS), v(RS + 8)
    a(f"v_add_f32 {ss}, {ss}, {v(RS+4)}")
    a(f"v_add_f32 {dd}, {dd}, {v(RS+12)}")
    pk = v(RS + 1)
    a(f"v_cvt_pk_bf16_f32 {pk}, {ss}, {dd}")
    unpack(pk, ss, dd)
    gg = v(RS + 2)
    a(f"v_mul_f32 {gg}, 0x{f2u(-LOG2E):x}, {dd}")
    a(f"v_exp_f32 {gg}, {gg}")
    a(f"v_add_f32 {gg}, 1.0, {gg}")
    a(f"v_rcp_f32 {gg}, {gg}")
    a(f"v_mul_f32 {gg}, {gg}, {dd}")
    a(f"v_cvt_pk_bf16_f32 {pk}, {gg}, {gg}")
    a(f"v_lshlrev_b32 {gg}, 16, {pk}")
    a(f"v_mul_f32 {ss}, {ss}, {gg}")
    a(f"v_cvt_pk_bf16_f32 {pk}, {ss}, {ss}")
    a(f"v_lshlrev_b32 {ss}, 16, {pk}")
    a(f"v_lshlrev_b32 {vXv}, 16, {vXv}")
    a(f"v_add_f32 {ss}, {ss}, {vXv}")
    a(f"v_cvt_pk_bf16_f32 {pk}, {ss}, {ss}")
    a("s_mov_b64 exec, 0xffff")
    a(f"buffer_store_short {pk}, {vXa}, {sOUT}, 0 offen")
    a("s_mov_b64 exec, -1")
    a.label("L_end", pad=stamps)
    if stamps:
        for k in range(8):
            a(f"v_mov_b32 v{T+k}, s{80+2*k}")
        a(f"s_lshl_b32 s61, s2, 3")
        a(f"s_add_u32 s61, s61, s54")
        a(f"s_lshl_b32 s61, s61, 5")
        a(f"s_add_u32 s61, s61, 0x200000")
        a(f"v_mov_b32 v{T+8}, s61")
        a("s_mov_b64 exec, 1")
        a(f"buffer_store_dwordx4 v[{T}:{T+3}], v{T+8}, s[40:43], 0 offen")
        a(f"buffer_store_dwordx4 v[{T+4}:{T+7}], v{T+8}, s[40:43], 0 offen offset:16")
    a.label("L_exit", pad=False)
    a("s_endpgm")
    a.raw('.section .rodata,"a"')
    a.raw(".p2align 6")
    a.raw(f".amdhsa_kernel {NAME}_kernel")
    a.raw("  .amdhsa_next_free_vgpr 256")
    a.raw("  .amdhsa_next_free_sgpr 96")
    a.raw("  .amdhsa_accum_offset 256")
    a.raw("  .amdhsa_group_segment_fixed_size 0")
    a.raw("  .amdhsa_kernarg_size 96")
    a.raw("  .amdhsa_user_sgpr_count 2")
    a.raw("  .amdhsa_user_sgpr_kernarg_segment_ptr 1")
    a.raw("  .amdhsa_system_sgpr_workgroup_id_x 1")
    a.raw("  .amdhsa_float_denorm_mode_32 3")
    a.raw(".end_amdhsa_kernel")
    sys.stderr.write(f"instructions: {a.ninst}, nops: {a.nops}\n")
    return a.text()


if __name__ == "__main__":
    import argparse
    ap = argparse.ArgumentParser()
    ap.add_argument("-o", default=f"cdna_kernels/{NAME}.s")
    ap.add_argument("--R", type=int, default=12)
    ap.add_argument("--K0", type=int, default=8)
    ap.add_argument("--pattern", default="gwg1")
    ap.add_argument("--pol", default="nt")
    ap.add_argument("--wpol", default="")
    ap.add_argument("--stamps", action="store_true")
    ap.add_argument("--Kpre", type=int, default=2)
    ap.add_argument("--hb0", type=int, default=1)
    ap.add_argument("--hb1", type=int, default=1)
    ap.add_argument("--lock", default="barrier")
    ap.add_argument("--vgrp", type=int, default=16)
    ap.add_argument("--rot", type=int, default=1)
    ap.add_argument("--touch", type=int, default=1)
    ap.add_argument("--gpol", default="")
    ap.add_argument("--ffg", type=int, default=1)
    ap.add_argument("--rotk", type=int, default=1)
    args = ap.parse_args()
    open(args.o, "w").write(gen(args.R, args.K0, args.pattern, args.pol, args.wpol, args.stamps, args.Kpre, args.hb0, args.hb1, args.lock, args.vgrp, args.rot, args.touch, args.gpol, args.ffg, args.rotk))
```
